```python
import torch

def _softmax(x, axis=-1):
    return torch.softmax(x, dim=axis)
def _gelu(x):
    return torch.nn.functional.gelu(x, approximate="tanh")
def _silu(x):
    return torch.nn.functional.silu(x)
def _sigmoid(x):
    return torch.sigmoid(x)
def _layernorm(x, axis=-1, eps=1e-5):
    m = x.mean(dim=axis, keepdim=True)
    v = x.var(dim=axis, keepdim=True, unbiased=False)
    return (x - m) / torch.sqrt(v + eps)
def _scatter_add(tgt, idx, src, axis=0):
    return tgt.clone().index_add_(axis, idx, src)
def _segment_sum(src, seg, n):
    out = torch.zeros((n,) + src.shape[1:], dtype=src.dtype)
    return out.index_add_(0, seg, src)
def _pad(x, pw):
    flat = tuple(v for pair in reversed(pw) for v in pair)
    return torch.nn.functional.pad(x, flat)

kernel_name = 'sequential_preLN__ssm_conv_s4d__glu_gated_reglu__prompt'

def setup_inputs():

    _w = (lambda a: (lambda t: t.to(torch.bfloat16) if t.is_floating_point() else t)(torch.as_tensor(a)))
    def _A_setup():
        Bsz, L, D, N = 1, 2048, 512, 128
        return {
            "u": _w((lambda *s: torch.randn(*s, dtype=torch.bfloat16) * 0.05)(Bsz, L, D)),
            "log_A_real": _w((lambda *s: torch.randn(*s, dtype=torch.bfloat16) * 6.4)(D, N) * 0.5),
            "A_imag": _w((lambda *s: torch.randn(*s, dtype=torch.bfloat16) * 0.05)(D, N) * 3.14),
            "C_real": _w((lambda *s: torch.randn(*s, dtype=torch.bfloat16) * 0.05)(D, N) / N ** 0.5),
            "C_imag": _w((lambda *s: torch.randn(*s, dtype=torch.bfloat16) * 0.05)(D, N) / N ** 0.5),
            "log_dt": _w((lambda *s: torch.randn(*s, dtype=torch.bfloat16) * 0.05)(D) * 0.5 - 4.0),
            "D_skip": _w((lambda *s: torch.randn(*s, dtype=torch.bfloat16) * 0.05)(D)),
        }
    _A_in = _A_setup()

    def _B_setup():
        B, S, D, F = 1, 2048, 512, 1376
        return {
            "x": _w((lambda *s: torch.randn(*s, dtype=torch.bfloat16) * 0.05)(B, S, D)),
            "W_gate": _w((lambda *s: torch.randn(*s, dtype=torch.bfloat16) * 0.4)(D, F) * (2.0 / D) ** 0.5),
            "W_up": _w((lambda *s: torch.randn(*s, dtype=torch.bfloat16) * 0.4)(D, F) * (2.0 / D) ** 0.5),
            "W_down": _w((lambda *s: torch.randn(*s, dtype=torch.bfloat16) * 0.4)(F, D) * (1.0 / F) ** 0.5),
        }
    _B_in = _B_setup()

    return {
        "A_u": _A_in["u"],
        "A_log_A_real": _A_in["log_A_real"],
        "A_A_imag": _A_in["A_imag"],
        "A_C_real": _A_in["C_real"],
        "A_C_imag": _A_in["C_imag"],
        "A_log_dt": _A_in["log_dt"],
        "A_D_skip": _A_in["D_skip"],
        "B_x": _B_in["x"],
        "B_W_gate": _B_in["W_gate"],
        "B_W_up": _B_in["W_up"],
        "B_W_down": _B_in["W_down"],
    }

def reference(A_u, A_log_A_real, A_A_imag, A_C_real, A_C_imag, A_log_dt, A_D_skip, B_x, B_W_gate, B_W_up, B_W_down):
    def _A_ref(u, log_A_real, A_imag, C_real, C_imag, log_dt, D_skip):
        L = u.shape[1]
        dt = torch.exp(log_dt)
        A = -torch.exp(log_A_real) + 1j * A_imag
        C = (C_real + 1j * C_imag) * dt[:, None]
        pos = (lambda x, dt: x.to(dt))(torch.arange(L), log_dt.dtype)
        P = torch.exp((A * dt[:, None])[:, :, None] * pos[None, None, :])
        K = 2.0 * torch.einsum("dn,dnl->dl", C, P).real
        L2 = 2 * L
        u_t = (lambda x, *d: x.permute(*d))(u, 0, 2, 1)
        Kf = (lambda x, *a, **k: torch.fft.rfft(x.float(), *a, **k))(K, L2)
        Uf = (lambda x, *a, **k: torch.fft.rfft(x.float(), *a, **k))(u_t, L2)
        y = (lambda x, *a, **k: torch.fft.irfft(x, *a, **k).to(torch.bfloat16))(Uf * Kf[None, :, :], L2)[:, :, :L]
        y = (lambda x, *d: x.permute(*d))(y, 0, 2, 1)
        return y + u * D_skip[None, None, :]

    def _B_ref(x, W_gate, W_up, W_down):
        gate = torch.einsum("bsd,df->bsf", x, W_gate)
        up = torch.einsum("bsd,df->bsf", x, W_up)
        gate = gate * (lambda x, dt: x.to(dt))(gate > 0, gate.dtype)
        h = gate * up
        return torch.einsum("bsf,fd->bsd", h, W_down)

    x = A_u
    h = x + _A_ref(_layernorm(x, axis=-1), A_log_A_real, A_A_imag, A_C_real, A_C_imag, A_log_dt, A_D_skip)
    h2 = h + _B_ref(_layernorm(h, axis=-1), B_W_gate, B_W_up, B_W_down)
    return h2
```

```python
UT, XT, KR0, KR1, HT, CS, HM = 0, 0x200000, 0x400000, 0x620000, 0x840000, 0xA40000, 0xA80000
WS_LIMIT = 0x1100000
KROW = 4112

class Asm:
    def __init__(self):
        self.lines = []
    def __call__(self, s):
        for l in s.strip("\n").split("\n"):
            l = l.strip()
            if l:
                self.lines.append("    " + l)
    def label(self, l):
        self.lines.append(l + ":")
    def comment(self, c):
        self.lines.append("    ; " + c)
    def text(self):
        return "\n".join(self.lines) + "\n"

def vr(b, n=1):
    return "v%d" % b if n == 1 else "v[%d:%d]" % (b, b + n - 1)
def sr(b, n=1):
    return "s%d" % b if n == 1 else "s[%d:%d]" % (b, b + n - 1)

def kernel_header(name):
    return """.globl %s
.p2align 8
.type %s,@function
%s:
""" % (name, name, name)

def kernel_desc(name, vgpr, sgpr=102, accum=None):
    if accum is None:
        accum = (vgpr + 3) // 4 * 4
    return """.section .rodata,"a"
.p2align 6
.amdhsa_kernel %s
  .amdhsa_next_free_vgpr %d
  .amdhsa_next_free_sgpr %d
  .amdhsa_accum_offset %d
  .amdhsa_group_segment_fixed_size 0
  .amdhsa_kernarg_size 112
  .amdhsa_user_sgpr_count 2
  .amdhsa_user_sgpr_kernarg_segment_ptr 1
  .amdhsa_system_sgpr_workgroup_id_x 1
.end_amdhsa_kernel
.text
""" % (name, vgpr, sgpr, accum)

def srd(a, d, ptr, size):
    a("s_mov_b32 s%d, s%d" % (d, ptr))
    a("s_and_b32 s%d, s%d, 0xffff" % (d + 1, ptr + 1))
    a("s_mov_b32 s%d, 0x%x" % (d + 2, size))
    a("s_mov_b32 s%d, 0x00020000" % (d + 3))

P_X, P_LAR, P_AIM, P_CR, P_CI, P_LDT, P_DSK, P_BX = 16, 18, 20, 22, 24, 26, 28, 30
P_WG, P_WU, P_WD, P_OUT = 32, 34, 36, 38
P_DBG, P_WS = 40, 42
def load_ptrs(a):
    a("""s_load_dwordx16 s[16:31], s[0:1], 0
    s_load_dwordx8 s[32:39], s[0:1], 64
    s_load_dwordx4 s[40:43], s[0:1], 96""")
```

```python
from common import *
N_LN, N_KG, N_CS = 128, 512, 44
K1_GRID = N_LN + N_KG + N_CS
K1_LDS = 34816
LOG2E = 0x3fb8aa3b
INV2PI = 0x3e22f983

def row_reduce16(a, v):
    for pat in ("quad_perm:[1,0,3,2]", "quad_perm:[2,3,0,1]", "row_half_mirror", "row_mirror"):
        a("s_nop 1")
        a("v_add_f32_dpp v%d, v%d, v%d %s row_mask:0xf bank_mask:0xf" % (v, v, v, pat))

def gen_ln(a):
    a.label("K1_LN")
    srd(a, 4, P_X, 2097152)
    srd(a, 8, P_WS, WS_LIMIT)
    a("""v_lshrrev_b32 v1, 4, v0
    v_and_b32 v2, 15, v0                  ; j
    v_lshlrev_b32 v3, 10, v1
    v_lshl_add_u32 v3, v2, 4, v3          ; voff
    s_lshl_b32 s3, s2, 14""")
    for t in range(4):
        a("buffer_load_dwordx4 v[%d:%d], v3, s[4:7], s3 offen offset:%d" % (8 + 4 * t, 11 + 4 * t, 256 * t))
    a("""v_mul_u32_u24 v4, 1088, v1
    v_lshl_add_u32 v4, v2, 4, v4
    s_mov_b32 s12, 0xffff0000""")
    a("s_waitcnt vmcnt(0)")
    for q in range(16):
        a("v_lshlrev_b32 v%d, 16, v%d" % (24 + 2 * q, 8 + q))
        a("v_and_b32 v%d, s12, v%d" % (25 + 2 * q, 8 + q))
    for t in range(4):
        a("ds_write_b128 v4, v[%d:%d] offset:%d" % (8 + 4 * t, 11 + 4 * t, 17408 + 256 * t))
    for c in range(4):
        a("v_add_f32 v%d, v%d, v%d" % (56 + c, 24 + c, 28 + c))
    for k in range(2, 8):
        for c in range(4):
            a("v_add_f32 v%d, v%d, v%d" % (56 + c, 56 + c, 24 + 4 * k + c))
    a("""v_add_f32 v56, v56, v57
    v_add_f32 v58, v58, v59
    v_add_f32 v56, v56, v58""")
    row_reduce16(a, 56)
    a("v_mul_f32 v57, 0x3b000000, v56   ; mean")
    for k in range(8):
        for c in range(4):
            a("v_sub_f32 v%d, v%d, v57" % (64 + c, 24 + 4 * k + c))
        for c in range(4):
            if k == 0:
                a("v_mul_f32 v%d, v%d, v%d" % (60 + c, 64 + c, 64 + c))
            else:
                a("v_fmac_f32 v%d, v%d, v%d" % (60 + c, 64 + c, 64 + c))
    a("""v_add_f32 v60, v60, v61
    v_add_f32 v62, v62, v63
    v_add_f32 v60, v60, v62""")
    row_reduce16(a, 60)
    a("""v_mul_f32 v60, 0x3b000000, v60   ; var
    v_cvt_pk_bf16_f32 v58, v57, v60
    v_lshlrev_b32 v57, 16, v58
    v_and_b32 v60, s12, v58
    v_add_f32 v60, 0x3727c5ac, v60        ; +1e-5
    v_cvt_pk_bf16_f32 v60, v60, v60
    v_lshlrev_b32 v60, 16, v60
    v_sqrt_f32 v60, v60
    s_nop 0
    v_cvt_pk_bf16_f32 v60, v60, v60
    v_lshlrev_b32 v60, 16, v60
    v_rcp_f32 v59, v60                    ; rs
    s_nop 0""")
    for q in range(16):
        x0, x1 = 24 + 2 * q, 25 + 2 * q
        a("v_sub_f32 v%d, v%d, v57" % (x0, x0))
        a("v_sub_f32 v%d, v%d, v57" % (x1, x1))
        a("v_cvt_pk_bf16_f32 v%d, v%d, v%d" % (x0, x0, x1))
        a("v_and_b32 v%d, s12, v%d" % (x1, x0))
        a("v_lshlrev_b32 v%d, 16, v%d" % (x0, x0))
        a("v_mul_f32 v%d, v%d, v59" % (x0, x0))
        a("v_mul_f32 v%d, v%d, v59" % (x1, x1))
        a("v_cvt_pk_bf16_f32 v%d, v%d, v%d" % (64 + q, x0, x1))
    for t in range(4):
        a("ds_write_b128 v4, v[%d:%d] offset:%d" % (64 + 4 * t, 67 + 4 * t, 256 * t))
    a("""v_and_b32 v1, 63, v0                ; lane
    v_lshrrev_b32 v2, 6, v0               ; wave
    v_bfe_u32 v5, v0, 2, 2                ; r
    v_mul_u32_u24 v5, 1088, v5
    v_lshrrev_b32 v6, 4, v1               ; q
    v_lshlrev_b32 v6, 5, v6               ; q*32 bytes
    v_and_b32 v7, 3, v0                   ; c
    v_lshl_add_u32 v6, v7, 3, v6
    v_lshl_add_u32 v6, v2, 8, v6
    v_add_u32 v5, v5, v6
    v_lshl_add_u32 v6, v2, 7, v1          ; d = 128w + lane
    v_lshlrev_b32 v6, 12, v6              ; *4096
    s_lshl_b32 s3, s2, 5                  ; l0*2
    s_waitcnt lgkmcnt(0)
    s_barrier""")
    for arr in range(2):
        for blk in range(2):
            b = 8 + 8 * (2 * arr + blk)
            for rr in range(4):
                a("ds_read_b64_tr_b16 v[%d:%d], v5 offset:%d" % (b + 2 * rr, b + 2 * rr + 1, arr * 17408 + rr * 4 * 1088 + blk * 128))
    for arr in range(2):
        for blk in range(2):
            b = 8 + 8 * (2 * arr + blk)
            a("s_add_u32 s13, s3, 0x%x" % ((UT if arr == 0 else XT) + blk * 262144))
            a("s_waitcnt lgkmcnt(%d)" % (12 - 4 * (2 * arr + blk)))
            a("buffer_store_dwordx4 v[%d:%d], v6, s[8:11], s13 offen" % (b, b + 3))
            a("buffer_store_dwordx4 v[%d:%d], v6, s[8:11], s13 offen offset:16" % (b + 4, b + 7))
    a("s_endpgm")

def gen_kgen(a):
    a.label("K1_KG")
    srd(a, 8, P_WS, WS_LIMIT)
    PT, HTAB, PART, TAB = 0, 2048, 2304, 14592
    a("""s_sub_u32 s3, s2, %d                ; channel d
    v_and_b32 v1, 127, v0                 ; mode
    s_lshl_b32 s12, s3, 8
    v_lshl_add_u32 v2, v1, 1, s12         ; byte off
    s_lshl_b32 s12, s3, 1
    v_mov_b32 v3, s12
    global_load_ushort v4, v2, s[%d:%d]
    global_load_ushort v5, v2, s[%d:%d]
    global_load_ushort v6, v2, s[%d:%d]
    global_load_ushort v7, v2, s[%d:%d]
    global_load_ushort v8, v3, s[%d:%d]""" % (N_LN, P_LAR, P_LAR + 1, P_AIM, P_AIM + 1, P_CR, P_CR + 1, P_CI, P_CI + 1, P_LDT, P_LDT + 1))
    a("""v_and_b32 v9, 15, v0                ; i
    v_and_b32 v10, 7, v9
    v_lshrrev_b32 v14, 3, v9
    v_lshl_add_u32 v10, v14, 7, v10       ; H0
    v_lshrrev_b32 v14, 2, v9
    v_lshlrev_b32 v14, 7, v14
    v_and_b32 v15, 3, v9
    v_lshl_add_u32 v14, v15, 1, v14
    v_add_u32 v14, 256, v14               ; H1 (i<8)
    v_subrev_u32 v15, 8, v9
    v_lshrrev_b32 v15, 1, v15
    v_lshlrev_b32 v15, 7, v15
    v_and_b32 v16, 1, v9
    v_lshl_add_u32 v15, v16, 2, v15
    v_add_u32 v15, 512, v15               ; H1 (i>=8)
    v_cmp_gt_u32 vcc, 8, v9
    v_lshlrev_b32 v12, 7, v9
    v_add_u32 v12, 1024, v12              ; H2
    v_cndmask_b32 v11, v15, v14, vcc      ; H1
    v_lshlrev_b32 v13, 3, v9              ; lo
    v_lshlrev_b32 v14, 2, v9
    v_lshlrev_b32 v15, 1, v10
    v_lshlrev_b32 v16, 1, v11
    v_lshlrev_b32 v17, 1, v12
    ds_write_b32 v14, v15 offset:%d
    ds_write_b32 v14, v16 offset:%d
    ds_write_b32 v14, v17 offset:%d
    v_cvt_f32_u32 v10, v10
    v_cvt_f32_u32 v11, v11
    v_cvt_f32_u32 v12, v12
    v_cvt_f32_u32 v13, v13
    s_mov_b32 s12, 0x%x
    s_mov_b32 s13, 0x%x
    s_waitcnt vmcnt(0)
    v_lshlrev_b32 v4, 16, v4
    v_lshlrev_b32 v5, 16, v5
    v_lshlrev_b32 v6, 16, v6
    v_lshlrev_b32 v7, 16, v7
    v_lshlrev_b32 v8, 16, v8
    v_mul_f32 v4, s12, v4
    v_mul_f32 v8, s12, v8
    v_exp_f32 v4, v4
    v_exp_f32 v8, v8
    s_nop 0
    v_cvt_pk_bf16_f32 v4, v4, v8
    v_and_b32 v8, 0xffff0000, v4          ; dt
    v_lshlrev_b32 v4, 16, v4              ; exp(lar) bf
    v_mul_f32 v4, v4, v8
    v_mul_f32 v5, v5, v8
    v_mul_f32 v6, v6, v8
    v_mul_f32 v7, v7, v8
    v_mul_f32 v20, s12, v4
    v_sub_f32 v20, 0, v20                 ; arp
    v_mul_f32 v21, s13, v5                ; aip
    v_add_f32 v22, v6, v6
    v_add_f32 v23, v7, v7
    v_lshlrev_b32 v1, 4, v1
    ds_write_b128 v1, v[20:23] offset:%d
    v_bfe_u32 v1, v0, 4, 2                ; kk
    v_lshrrev_b32 v2, 6, v0               ; wave
    v_lshlrev_b32 v2, 9, v2               ; wave*32*16
    v_lshl_add_u32 v1, v1, 4, v2
    s_waitcnt lgkmcnt(0)
    s_barrier""" % (HTAB, HTAB + 64, HTAB + 128, LOG2E, INV2PI, PT))
    for q in range(8):
        a("ds_read_b128 v[%d:%d], v1 offset:%d" % (24 + 4 * q, 27 + 4 * q, PT + 64 * q))
    for r in range(12):
        a("v_mov_b32 v%d, 0" % (56 + r))
    for q in range(8):
        P = 24 + 4 * q
        a("s_waitcnt lgkmcnt(%d)" % (7 - q))
        o = 8 * (q & 1) + 80
        srcs = [10, 11, 12, 13]
        for t in range(4):
            a("v_mul_f32 v%d, v%d, v%d" % (68 + t, P, srcs[t]))
            a("v_mul_f32 v%d, v%d, v%d" % (72 + t, P + 1, srcs[t]))
        for t in range(4):
            a("v_exp_f32 v%d, v%d" % (68 + t, 68 + t))
            a("v_fract_f32 v%d, v%d" % (72 + t, 72 + t))
        for t in range(4):
            a("v_cos_f32 v%d, v%d" % (76 + t, 72 + t))
            a("v_sin_f32 v%d, v%d" % (72 + t, 72 + t))
        for t in range(3):
            a("v_mul_f32 v%d, v%d, v%d" % (96 + t, 68 + t, P + 2))
            a("v_mul_f32 v%d, v%d, v%d" % (68 + t, 68 + t, P + 3))
        a("v_mul_f32 v%d, v71, v79" % (o + 6))
        a("v_mul_f32 v%d, v71, v75" % (o + 7))
        for t in range(3):
            a("v_mul_f32 v%d, v%d, v%d" % (100 + t, 68 + t, 72 + t))
            a("v_mul_f32 v%d, v%d, v%d" % (104 + t, 68 + t, 76 + t))
        for t in range(3):
            a("v_fma_f32 v%d, v%d, v%d, -v%d" % (o + 2 * t, 96 + t, 76 + t, 100 + t))
            a("v_fma_f32 v%d, -v%d, v%d, -v%d" % (o + 2 * t + 1, 96 + t, 72 + t, 104 + t))
        a("s_nop 1")
        for t in range(3):
            a("v_mfma_f32_16x16x4_f32 v[%d:%d], v%d, v%d, v[%d:%d]" % (56 + 4 * t, 59 + 4 * t, o + 2 * t, o + 6, 56 + 4 * t, 59 + 4 * t))
        for t in range(3):
            a("v_mfma_f32_16x16x4_f32 v[%d:%d], v%d, v%d, v[%d:%d]" % (56 + 4 * t, 59 + 4 * t, o + 2 * t + 1, o + 7, 56 + 4 * t, 59 + 4 * t))
    a("""v_lshrrev_b32 v2, 6, v0
    v_mul_u32_u24 v2, 3072, v2
    v_and_b32 v3, 63, v0
    v_lshl_add_u32 v2, v3, 4, v2
    v_lshlrev_b32 v3, 4, v0
    v_lshrrev_b32 v4, 6, v0               ; tile
    v_lshlrev_b32 v4, 6, v4
    v_bfe_u32 v5, v0, 4, 2
    v_lshl_add_u32 v4, v5, 4, v4
    v_and_b32 v5, 15, v0
    v_lshlrev_b32 v5, 4, v5               ; 8*n*2
    s_nop 7
    s_nop 3""")
    for t in range(3):
        a("ds_write_b128 v2, v[%d:%d] offset:%d" % (56 + 4 * t, 59 + 4 * t, PART + 1024 * t))
    a("""v_lshlrev_b32 v6, 3, v0
    v_sub_u32 v6, 2047, v6                ; l for e=0""")
    for e in range(8):
        a("v_subrev_u32 v%d, %d, v6" % (30 + e, e))
        a("v_cvt_f32_i32 v%d, v%d" % (30 + e, 30 + e))
    for e in range(0, 8, 2):
        e1 = e + 1
        a("v_cvt_pk_bf16_f32 v%d, v%d, v%d" % (40 + e // 2, 30 + e, 30 + e1))
    for e in range(8):
        if e % 2 == 0:
            a("v_lshlrev_b32 v%d, 16, v%d" % (30 + e, 40 + e // 2))
        else:
            a("v_and_b32 v%d, 0xffff0000, v%d" % (30 + e, 40 + e // 2))
    for e in range(8):
        a("v_cvt_u32_f32 v%d, v%d" % (30 + e, 30 + e))
        a("v_lshlrev_b32 v%d, 1, v%d" % (30 + e, 30 + e))
    a("""s_waitcnt lgkmcnt(0)
    s_barrier
    v_cmp_gt_u32 vcc, 192, v0
    s_and_saveexec_b64 s[14:15], vcc
    s_cbranch_execz K1_KG_C2""")
    for w in range(4):
        a("ds_read_b128 v[%d:%d], v3 offset:%d" % (56 + 4 * w, 59 + 4 * w, PART + 3072 * w))
    a("ds_read_b128 v[72:75], v4 offset:%d" % HTAB)
    a("s_waitcnt lgkmcnt(0)")
    for r in range(4):
        a("v_add_f32 v%d, v%d, v%d" % (56 + r, 56 + r, 60 + r))
        a("v_add_f32 v%d, v%d, v%d" % (64 + r, 64 + r, 68 + r))
    for r in range(4):
        a("v_add_f32 v%d, v%d, v%d" % (56 + r, 56 + r, 64 + r))
        a("v_add_u32 v%d, v%d, v5" % (72 + r, 72 + r))
    a("""v_cvt_pk_bf16_f32 v56, v56, v57
    v_cvt_pk_bf16_f32 v58, v58, v59
    ds_write_b16 v72, v56 offset:%d
    ds_write_b16_d16_hi v73, v56 offset:%d
    ds_write_b16 v74, v58 offset:%d
    ds_write_b16_d16_hi v75, v58 offset:%d""" % (TAB, TAB, TAB, TAB))
    a.label("K1_KG_C2")
    a("""s_mov_b64 exec, s[14:15]
    s_waitcnt lgkmcnt(0)
    s_barrier""")
    for e in range(8):
        a("ds_read_u16 v%d, v%d offset:%d" % (44 + e, 30 + e, TAB))
    a("""s_mul_i32 s12, s3, %d
    s_add_u32 s13, s12, 0x%x
    s_add_u32 s12, s12, 0x%x
    v_mov_b32 v64, 0
    v_mov_b32 v65, 0
    v_mov_b32 v66, 0
    v_mov_b32 v67, 0
    v_cmp_eq_u32 vcc, 255, v0
    s_waitcnt lgkmcnt(0)""" % (KROW, KR1, KR0))
    for j in range(4):
        a("v_lshl_or_b32 v%d, v%d, 16, v%d" % (56 + j, 45 + 2 * j, 44 + 2 * j))
    a("""buffer_store_dwordx4 v[56:59], v3, s[8:11], s12 offen
    s_and_saveexec_b64 s[14:15], vcc
    s_cbranch_execz K1_KG_END
    buffer_store_dwordx4 v[64:67], v3, s[8:11], s12 offen offset:16""")
    a.label("K1_KG_END")
    a("s_endpgm")

def gen_cs(a):
    a.label("K1_CS")
    srd(a, 8, P_WS, WS_LIMIT)
    a("""s_sub_u32 s3, s2, %d
    s_cmp_ge_u32 s3, 22
    s_cselect_b32 s4, s%d, s%d
    s_cselect_b32 s5, s%d, s%d
    s_cselect_b32 s12, 22, 0
    s_cselect_b32 s14, 5632, 0
    s_sub_u32 s3, s3, s12                 ; cb
    s_and_b32 s5, s5, 0xffff
    s_mov_b32 s6, %d
    s_mov_b32 s7, 0x00020000
    v_and_b32 v1, 7, v0                   ; cj
    v_lshrrev_b32 v2, 3, v0               ; rg
    s_mov_b32 s12, %d
    v_mul_lo_u32 v3, v2, s12
    v_lshl_add_u32 v3, v1, 4, v3
    s_lshl_b32 s13, s3, 7""" % (N_LN + N_KG, P_WU, P_WG, P_WU + 1, P_WG + 1, 512 * 2752, 16 * 2752))
    for r in range(16):
        a("buffer_load_dwordx4 v[%d:%d], v3, s[4:7], s13 offen" % (16 + 4 * r, 19 + 4 * r))
        a("s_add_u32 s13, s13, 2752")
    a("""s_mov_b32 s12, 0xffff0000
    v_lshlrev_b32 v2, 8, v2
    v_lshl_add_u32 v2, v1, 5, v2""")
    for r in range(16):
        a("s_waitcnt vmcnt(%d)" % (15 - r))
        for j in range(4):
            s = 16 + 4 * r + j
            if r == 0:
                a("v_lshlrev_b32 v%d, 16, v%d" % (8 + 2 * j, s))
                a("v_and_b32 v%d, s12, v%d" % (9 + 2 * j, s))
            else:
                a("v_lshlrev_b32 v4, 16, v%d" % s)
                a("v_and_b32 v5, s12, v%d" % s)
                a("v_add_f32 v%d, v%d, v4" % (8 + 2 * j, 8 + 2 * j))
                a("v_add_f32 v%d, v%d, v5" % (9 + 2 * j, 9 + 2 * j))
    a("""ds_write_b128 v2, v[8:11]
    ds_write_b128 v2, v[12:15] offset:16
    v_lshlrev_b32 v3, 2, v0
    s_waitcnt lgkmcnt(0)
    s_barrier
    v_cmp_gt_u32 vcc, 64, v0
    s_and_saveexec_b64 s[20:21], vcc
    s_cbranch_execz K1_CS_END""")
    for half in range(2):
        for r in range(16):
            a("ds_read_b32 v%d, v3 offset:%d" % (16 + r, 256 * (16 * half + r)))
        a("s_waitcnt lgkmcnt(0)")
        for r in range(0, 16, 2):
            a("v_add_f32 v%d, v%d, v%d" % (16 + r, 16 + r, 17 + r))
        for r in range(0, 16, 4):
            a("v_add_f32 v%d, v%d, v%d" % (16 + r, 16 + r, 18 + r))
        a("v_add_f32 v16, v16, v20")
        a("v_add_f32 v24, v24, v28")
        if half == 0:
            a("v_add_f32 v8, v16, v24")
        else:
            a("v_add_f32 v16, v16, v24")
            a("v_add_f32 v8, v8, v16")
    a("""s_lshl_b32 s13, s3, 8
    s_add_u32 s13, s13, s14
    s_add_u32 s13, s13, 0x%x
    buffer_store_dword v8, v3, s[8:11], s13 offen""" % CS)
    a.label("K1_CS_END")
    a("s_endpgm")

def gen_k1():
    a = Asm()
    a("s_cmp_ge_u32 s2, %d" % K1_GRID)
    a("s_cbranch_scc1 K1_EXIT")
    load_ptrs(a)
    a("s_waitcnt lgkmcnt(0)")
    a("s_cmp_ge_u32 s2, %d" % (N_LN + N_KG))
    a("s_cbranch_scc1 K1_CS")
    a("s_cmp_ge_u32 s2, %d" % N_LN)
    a("s_cbranch_scc1 K1_KG")
    gen_ln(a)
    gen_kgen(a)
    gen_cs(a)
    a.label("K1_EXIT")
    a("s_endpgm")
    return kernel_header("k1_kernel") + a.text() + kernel_desc("k1_kernel", 112, 48)
```

```python
from common import *
K2_GRID = 256
S = 4160
UOFF = 4 * S
CH_SZ = UOFF + 5120
RED = 2 * CH_SZ
K2_LDS = 83968

def gen_k2():
    a = Asm()
    a("s_cmp_ge_u32 s2, %d" % K2_GRID)
    a("s_cbranch_scc1 K2_EXIT")
    load_ptrs(a)
    a("""v_and_b32 v1, 63, v0                ; lane
    v_lshrrev_b32 v2, 6, v0               ; wave
    v_and_b32 v3, 15, v0                  ; i / a'
    v_readfirstlane_b32 s44, v2
    v_bfe_u32 v4, v0, 4, 2                ; g
    v_lshlrev_b32 v5, 4, v1               ; lane*16 (dma voffset)
    s_nop 1
    s_lshr_b32 s45, s44, 1                ; ch
    s_and_b32 s46, s44, 1                 ; w2
    s_mul_i32 s47, s45, %d                ; chbase
    s_lshl_b32 s48, s2, 1
    s_add_u32 s48, s48, s45               ; d
    s_waitcnt lgkmcnt(0)""" % CH_SZ)
    srd(a, 8, P_WS, WS_LIMIT)
    a("s_lshl_b32 s49, s2, 2")
    a("s_load_dword s50, s[%d:%d], s49" % (P_DSK, P_DSK + 1))
    a("""s_mul_i32 s51, s48, %d               ; d*KROW
    s_lshl_b32 s52, s46, 2                ; 4*w2 bytes
    s_add_u32 s51, s51, s52
    s_add_u32 s52, s51, 0x%x              ; even copy src
    s_add_u32 s53, s51, 0x%x              ; odd copy src (+2 bytes)
    s_mul_i32 s54, s46, %d
    s_add_u32 s54, s54, s47               ; lds dst of copy 2*w2
    s_mov_b32 m0, s54
    s_add_u32 s55, s54, %d""" % (KROW, KR0, KR0 + 2, 2 * S, S))
    for p in range(4):
        a("buffer_load_dwordx4 v5, s[8:11], s52 offen offset:%d lds" % (1024 * p))
    a("s_mov_b32 m0, s55")
    a("""s_lshl_b32 s56, s48, 12
    s_lshl_b32 s57, s46, 11
    s_add_u32 s56, s56, s57               ; d*4096 + w2*2048 (UT=0)""")
    for p in range(4):
        a("buffer_load_dwordx4 v5, s[8:11], s53 offen offset:%d lds" % (1024 * p))
    a("""s_add_u32 s58, s47, s57
    s_add_u32 s58, s58, %d
    s_mov_b32 m0, s58""" % (UOFF + 1024))
    a("""v_lshlrev_b32 v6, 6, v3
    v_lshl_add_u32 v6, v4, 3, v6          ; 64a' + 8g""")
    for p in range(2):
        a("buffer_load_dwordx4 v5, s[8:11], s56 offen offset:%d lds" % (1024 * p))
    a("s_add_u32 s59, s56, 0x%x" % XT)
    for t in range(4):
        a("buffer_load_dwordx2 v[%d:%d], v6, s[8:11], s59 offen offset:%d" % (176 + 2 * t, 177 + 2 * t, 1024 * (t >> 1) + 32 * (t & 1)))
    a("""v_mov_b32 v8, 0
    v_mov_b32 v9, 0
    v_mov_b32 v10, 0
    v_mov_b32 v11, 0
    v_add_u32 v7, s47, v5                 ; chbase + lane*16
    v_lshrrev_b32 v12, 2, v1              ; copy idx (lanes<16)
    v_mul_u32_u24 v12, %d, v12
    v_and_b32 v13, 3, v1
    v_lshl_add_u32 v12, v13, 4, v12
    v_add_u32 v12, s47, v12
    ds_write_b128 v7, v[8:11] offset:%d
    v_cmp_gt_u32 vcc, 16, v1
    s_and_saveexec_b64 s[60:61], vcc
    ds_write_b128 v12, v[8:11] offset:4096
    s_mov_b64 exec, s[60:61]""" % (S, UOFF))
    a("""v_and_b32 v14, 3, v3
    v_sub_u32 v14, 3, v14                 ; c
    v_mul_u32_u24 v14, %d, v14
    v_lshrrev_b32 v15, 2, v3
    v_lshlrev_b32 v15, 3, v15             ; 8*(i>>2) bytes
    v_sub_u32 v14, v14, v15
    v_lshl_add_u32 v14, v4, 4, v14        ; + 16g
    s_lshl_b32 s60, s46, 9                ; 512*w2
    s_sub_u32 s61, s47, s60
    s_add_u32 s61, s61, %d
    v_add_u32 v14, s61, v14               ; vA
    v_lshlrev_b32 v15, 6, v3
    v_lshl_add_u32 v15, v4, 4, v15        ; 64a' + 16g
    s_sub_u32 s61, s47, s60
    s_add_u32 s61, s61, %d
    v_add_u32 v15, s61, v15               ; vB""" % (S, 4088 - 448 - 3072 - 32, UOFF + 1024 - 448))
    for r in range(32):
        a("v_mov_b32 v%d, 0" % (16 + r))
    a("""s_waitcnt vmcnt(4) lgkmcnt(0)
    s_barrier""")
    def acc(mt, nt): return 16 + 4 * (4 * mt + nt)
    FB = [48, 96]
    def loads(t, fb):
        for q in range(4):
            a("ds_read_b128 v[%d:%d], v15 offset:%d" % (fb + 4 * q, fb + 4 * q + 3, 64 * (7 - t) + 1024 * q))
        for j in range(4):
            for mt in range(2):
                r = fb + 16 + 4 * (2 * j + mt)
                off = 64 * (7 - t) + 1024 * (3 - j) + 32 * (1 - mt)
                a("ds_read_b64 v[%d:%d], v14 offset:%d" % (r, r + 1, off))
                a("ds_read_b64 v[%d:%d], v14 offset:%d" % (r + 2, r + 3, off + 8))
    loads(0, FB[0])
    for t in range(8):
        fb = FB[t & 1]
        a("s_waitcnt lgkmcnt(0)")
        mf = []
        for j in range(4):
            for nt in range(j, 4):
                for mt in range(2):
                    r = fb + 16 + 4 * (2 * j + mt)
                    b = fb + 4 * (nt - j)
                    c = acc(mt, nt)
                    mf.append("v_mfma_f32_16x16x32_bf16 v[%d:%d], v[%d:%d], v[%d:%d], v[%d:%d]" % (c, c + 3, r, r + 3, b, b + 3, c, c + 3))
        if t < 7:
            sub = Asm();
            a2 = a;
            tmp = Asm()
            old = a.lines; a.lines = tmp.lines; loads(t + 1, FB[(t + 1) & 1]); a.lines = old
            ld = [l.strip() for l in tmp.lines]
            for k in range(20):
                a(mf[k]); a(ld[k])
        else:
            for m in mf: a(m)
    a("""s_lshl_b32 s60, s44, 12
    s_add_u32 s60, s60, %d
    s_xor_b32 s61, s44, 1
    s_lshl_b32 s61, s61, 12
    s_add_u32 s61, s61, %d
    v_add_u32 v7, s60, v5
    v_add_u32 v12, s61, v5
    s_add_u32 s62, s47, s57
    s_add_u32 s62, s62, %d
    v_add_u32 v13, s62, v6                ; u read addr (C layout)
    s_cmp_eq_u32 s46, 0
    s_nop 4
    s_cbranch_scc1 K2_W0""" % (RED, RED, UOFF + 1024))
    def red(keep, send):
        for mt in range(2):
            for n in range(2):
                c = acc(mt, send + n)
                a("ds_write_b128 v7, v[%d:%d] offset:%d" % (c, c + 3, 1024 * (2 * n + mt)))
        for n in range(2):
            for mt in range(2):
                c = acc(mt, keep + n)
                for r in range(4):
                    a("v_mov_b32 v%d, v%d" % (48 + 4 * (2 * n + mt) + r, c + r))
    red(2, 0)
    a("s_branch K2_J")
    a.label("K2_W0")
    red(0, 2)
    a.label("K2_J")
    for t in range(4):
        a("ds_read_b64 v[%d:%d], v13 offset:%d" % (96 + 2 * t, 97 + 2 * t, 1024 * (t >> 1) + 32 * (t & 1)))
    a("""s_waitcnt lgkmcnt(0)
    s_barrier""")
    for t in range(4):
        a("ds_read_b128 v[%d:%d], v12 offset:%d" % (64 + 4 * t, 67 + 4 * t, 1024 * t))
    a("""s_lshl_b32 s60, s45, 4
    s_lshr_b32 s50, s50, s60
    s_lshl_b32 s50, s50, 16               ; D_skip f32
    s_mov_b32 s60, 0xffff0000
    s_add_u32 s59, s56, 0x%x
    s_waitcnt vmcnt(0) lgkmcnt(0)""" % HT)
    for t in range(4):
        for r in range(4):
            a("v_add_f32 v%d, v%d, v%d" % (48 + 4 * t + r, 48 + 4 * t + r, 64 + 4 * t + r))
    for t in range(4):
        for p in range(2):
            y0, y1 = 48 + 4 * t + 2 * p, 49 + 4 * t + 2 * p
            u = 96 + 2 * t + p
            x = 176 + 2 * t + p
            a("""v_cvt_pk_bf16_f32 v{y0}, v{y0}, v{y1}
            v_lshlrev_b32 v110, 16, v{u}
            v_and_b32 v111, s60, v{u}
            v_mul_f32 v110, s50, v110
            v_mul_f32 v111, s50, v111
            v_cvt_pk_bf16_f32 v110, v110, v111
            v_and_b32 v{y1}, s60, v{y0}
            v_lshlrev_b32 v{y0}, 16, v{y0}
            v_and_b32 v111, s60, v110
            v_lshlrev_b32 v110, 16, v110
            v_add_f32 v{y0}, v{y0}, v110
            v_add_f32 v{y1}, v{y1}, v111
            v_cvt_pk_bf16_f32 v{y0}, v{y0}, v{y1}
            v_lshlrev_b32 v110, 16, v{x}
            v_and_b32 v111, s60, v{x}
            v_and_b32 v{y1}, s60, v{y0}
            v_lshlrev_b32 v{y0}, 16, v{y0}
            v_add_f32 v{y0}, v{y0}, v110
            v_add_f32 v{y1}, v{y1}, v111
            v_cvt_pk_bf16_f32 v{o}, v{y0}, v{y1}""".format(y0=y0, y1=y1, u=u, x=x, o=112 + 2 * t + p))
        a("buffer_store_dwordx2 v[%d:%d], v6, s[8:11], s59 offen offset:%d" % (112 + 2 * t, 113 + 2 * t, 1024 * (t >> 1) + 32 * (t & 1)))
    a.label("K2_EXIT")
    a("s_endpgm")
    return kernel_header("k2_kernel") + a.text() + kernel_desc("k2_kernel", 184, 64)
```

```python
from common import *
K3_GRID = 256
K3_LDS = 163840
STG = 40960
GOFF, UOFF3 = 16384, 28672

def gen_k3():
    a = Asm()
    a("s_cmp_ge_u32 s2, %d" % K3_GRID)
    a("s_cbranch_scc1 K3_EXIT")
    load_ptrs(a)
    a("""v_and_b32 v1, 63, v0                ; lane
    v_lshrrev_b32 v2, 6, v0               ; wave
    v_and_b32 v3, 15, v0                  ; n
    v_readfirstlane_b32 s44, v2
    v_bfe_u32 v4, v0, 4, 2                ; g
    s_and_b32 s45, s2, 7                  ; xcd
    s_lshr_b32 s46, s2, 3                 ; local
    s_and_b32 s47, s45, 1
    s_lshl_b32 s47, s47, 3
    s_and_b32 s48, s46, 7
    s_add_u32 s47, s47, s48               ; mt
    s_lshr_b32 s48, s45, 1
    s_lshl_b32 s48, s48, 2
    s_lshr_b32 s49, s46, 3
    s_add_u32 s48, s48, s49               ; ng
    s_mul_i32 s48, s48, 43
    s_add_u32 s48, s48, 4
    s_lshr_b32 s48, s48, 3
    s_min_u32 s48, s48, 80                ; ft0
    s_lshl_b32 s47, s47, 7                ; l0
    s_lshl_b32 s48, s48, 4                ; f0
    s_waitcnt lgkmcnt(0)""")
    srd(a, 8, P_WS, WS_LIMIT)
    a("s_cmp_ge_u32 s44, 4")
    a("s_cbranch_scc1 K3_LOADER")
    a("""s_and_b32 s50, s44, 1               ; wm
    s_lshr_b32 s51, s44, 1                ; wn
    v_lshrrev_b32 v5, 2, v3               ; r
    v_and_b32 v6, 3, v3                   ; cc
    v_lshl_add_u32 v7, v4, 2, v5          ; 4g + r
    v_and_b32 v8, 7, v7                   ; k&7""")
    for x in range(4):
        a("""s_lshl_b32 s52, s51, 1
        s_add_u32 s52, s52, %d
        s_and_b32 s52, s52, 3
        s_lshl_b32 s53, s50, 2
        s_add_u32 s52, s52, s53
        v_xor_b32 v9, s52, v8
        v_lshlrev_b32 v9, 5, v9
        v_lshl_add_u32 v9, v6, 3, v9
        v_lshl_add_u32 v%d, v7, 8, v9""" % (x, 10 + x))
    a("v_and_b32 v8, 1, v4")
    for ft in range(3):
        a("""s_mul_i32 s52, s51, 3
        s_add_u32 s52, s52, %d
        v_xor_b32 v9, s52, v8
        v_lshlrev_b32 v9, 5, v9
        v_lshl_add_u32 v9, v6, 3, v9
        v_mul_u32_u24 v%d, 192, v7
        v_add_u32 v%d, v%d, v9""" % (ft, 236 + ft, 236 + ft, 236 + ft))
    a("""s_mul_i32 s52, s51, 48
    s_add_u32 s52, s52, s48
    s_lshl_b32 s52, s52, 2
    s_add_u32 s52, s52, 0x%x
    v_lshlrev_b32 v9, 4, v4""" % CS)
    for ft in range(3):
        for mat in range(2):
            r = 212 + 4 * (2 * ft + mat)
            a("buffer_load_dwordx4 v[%d:%d], v9, s[8:11], s52 offen offset:%d" % (r, r + 3, 64 * ft + 5632 * mat) if 64 * ft + 5632 * mat < 4096 else
              "s_add_u32 s53, s52, %d\nbuffer_load_dwordx4 v[%d:%d], v9, s[8:11], s53 offen offset:%d" % (5632, r, r + 3, 64 * ft))
    for r in range(16, 128):
        a("v_mov_b32 v%d, 0" % r)
    for r in range(128, 132):
        a("v_mov_b32 v%d, 0x3f803f80" % r)
    def acc(x, ft, mat): return 16 + 4 * ((x * 3 + ft) * 2 + mat)
    FB = [132, 172]
    def reads(ks, fb):
        l = []
        for x in range(4):
            for rd in range(2):
                l.append("ds_read_b64_tr_b16 v[%d:%d], v%d offset:%d" % (fb + 4 * x + 2 * rd, fb + 4 * x + 2 * rd + 1, 10 + x, (32 * ks + 16 * rd) * 256))
        for ft in range(3):
            for mat in range(2):
                for rd in range(2):
                    r = fb + 16 + 4 * (2 * ft + mat) + 2 * rd
                    l.append("ds_read_b64_tr_b16 v[%d:%d], v%d offset:%d" % (r, r + 1, 236 + ft, (GOFF if mat == 0 else UOFF3) + (32 * ks + 16 * rd) * 192))
        return l
    def mfmas(fb):
        l = []
        for ft in range(3):
            for mat in range(2):
                for x in range(4):
                    c = acc(x, ft, mat); w = fb + 16 + 4 * (2 * ft + mat); h = fb + 4 * x
                    l.append("v_mfma_f32_16x16x32_bf16 v[%d:%d], v[%d:%d], v[%d:%d], v[%d:%d]" % (c, c + 3, w, w + 3, h, h + 3, c, c + 3))
        for x in range(2):
            h = fb + 4 * x
            l.append("v_mfma_f32_16x16x32_bf16 v[%d:%d], v[%d:%d], v[%d:%d], v[%d:%d]" % (112 + 4 * x, 115 + 4 * x, h, h + 3, h, h + 3, 112 + 4 * x, 115 + 4 * x))
            l.append("v_mfma_f32_16x16x32_bf16 v[%d:%d], v[128:131], v[%d:%d], v[%d:%d]" % (120 + 4 * x, 123 + 4 * x, h, h + 3, 120 + 4 * x, 123 + 4 * x))
        return l
    def inter(m, r):
        for i, x in enumerate(m):
            a(x)
            if i < len(r): a(r[i])
    a("s_barrier")
    for l in reads(0, FB[0]): a(l)
    for c in range(8):
        a("s_waitcnt lgkmcnt(0)")
        inter(mfmas(FB[0]), reads(1, FB[1]))
        a("s_waitcnt lgkmcnt(0)")
        if c < 7:
            a("s_barrier")
            d = STG if (c + 1) % 4 else -3 * STG
            for r in [10, 11, 12, 13, 236, 237, 238]:
                if d > 0: a("v_add_u32 v%d, %d, v%d" % (r, d, r))
                else: a("v_subrev_u32 v%d, %d, v%d" % (r, -d, r))
            inter(mfmas(FB[1]), reads(0, FB[0]))
        else:
            inter(mfmas(FB[1]), [])
    a("""s_lshl_b32 s52, s50, 6
    s_lshl_b32 s53, s51, 5
    s_add_u32 s52, s52, s53
    v_add_u32 v9, s52, v3
    v_lshlrev_b32 v9, 3, v9
    v_and_b32 v6, 3, v3                   ; n&3
    v_lshrrev_b32 v5, 2, v3               ; n>>2
    s_nop 7""")
    for x in range(2):
        g = 112 + 4 * x
        a("""v_cmp_eq_u32 vcc, 1, v6
        s_nop 1
        v_cndmask_b32 v{t}, v{g0}, v{g1}, vcc
        v_cmp_eq_u32 vcc, 2, v6
        s_nop 1
        v_cndmask_b32 v{t}, v{t}, v{g2}, vcc
        v_cmp_eq_u32 vcc, 3, v6
        s_nop 1
        v_cndmask_b32 v{t}, v{t}, v{g3}, vcc
        v_mov_b32 v{s}, v{sm}""".format(t=133 + 2 * x, s=132 + 2 * x, g0=g, g1=g + 1, g2=g + 2, g3=g + 3, sm=120 + 4 * x))
    a("""v_cmp_eq_u32 vcc, v4, v5
    s_and_saveexec_b64 s[54:55], vcc
    ds_write_b64 v9, v[132:133]
    ds_write_b64 v9, v[134:135] offset:128
    s_mov_b64 exec, s[54:55]
    s_lshl_b32 s52, s50, 6
    v_add_u32 v9, s52, v3
    v_lshlrev_b32 v9, 3, v9
    s_waitcnt lgkmcnt(0)
    s_barrier""")
    for x in range(4):
        a("""s_lshl_b32 s52, s51, 1
        s_add_u32 s52, s52, %d
        s_and_b32 s52, s52, 3
        s_lshl_b32 s%d, s52, 4              ; 16*actual
        s_lshl_b32 s52, s52, 7
        v_add_u32 v8, s52, v9
        ds_read_b64 v[%d:%d], v8""" % (x, 56 + x, 132 + 2 * x, 133 + 2 * x))
    a("""s_lshl_b32 s52, s50, 6
    s_add_u32 s52, s52, s47
    v_add_u32 v8, s52, v3
    s_mov_b32 s52, 2752
    v_mul_lo_u32 v8, v8, s52
    s_mul_i32 s52, s51, 48
    s_add_u32 s52, s52, s48
    s_lshl_b32 s52, s52, 1
    s_add_u32 s52, s52, 0x%x
    v_lshl_add_u32 v8, v4, 3, v8
    s_mov_b32 s60, 0xffff0000
    s_waitcnt vmcnt(0) lgkmcnt(0)""" % HM)
    for x in range(4):
        sm, sq = 132 + 2 * x, 133 + 2 * x
        a("""v_mul_f32 v{sm}, 0x3b000000, v{sm}
        v_mul_f32 v{sq}, 0x3b000000, v{sq}
        v_fma_f32 v{sq}, -v{sm}, v{sm}, v{sq}
        v_max_f32 v{sq}, 0, v{sq}
        v_cvt_pk_bf16_f32 v{sm}, v{sm}, v{sq}
        v_and_b32 v{sq}, s60, v{sm}
        v_lshlrev_b32 v{sm}, 16, v{sm}
        v_add_f32 v{sq}, 0x3727c5ac, v{sq}
        v_cvt_pk_bf16_f32 v{sq}, v{sq}, v{sq}
        v_lshlrev_b32 v{sq}, 16, v{sq}
        v_sqrt_f32 v{sq}, v{sq}
        s_nop 0
        v_cvt_pk_bf16_f32 v{sq}, v{sq}, v{sq}
        v_lshlrev_b32 v{sq}, 16, v{sq}
        v_rcp_f32 v{sq}, v{sq}
        s_mul_i32 s{so}, s{so}, 2752
        s_add_u32 s{so}, s{so}, s52""".format(sm=sm, sq=sq, so=56 + x))
    for x in range(4):
        sm, rs = 132 + 2 * x, 133 + 2 * x
        for ft in range(3):
            g = acc(x, ft, 0); u = acc(x, ft, 1); cg = 212 + 8 * ft; cu = cg + 4
            for r in range(4):
                a("v_fma_f32 v%d, -v%d, v%d, v%d" % (g + r, sm, cg + r, g + r))
                a("v_fma_f32 v%d, -v%d, v%d, v%d" % (u + r, sm, cu + r, u + r))
            for r in range(4):
                a("v_mul_f32 v%d, v%d, v%d" % (g + r, g + r, rs))
                a("v_mul_f32 v%d, v%d, v%d" % (u + r, u + r, rs))
            for p in range(2):
                a("""v_cvt_pk_bf16_f32 v{g0}, v{g0}, v{g1}
                v_cvt_pk_bf16_f32 v{u0}, v{u0}, v{u1}
                v_and_b32 v{g1}, s60, v{g0}
                v_lshlrev_b32 v{g0}, 16, v{g0}
                v_and_b32 v{u1}, s60, v{u0}
                v_lshlrev_b32 v{u0}, 16, v{u0}
                v_max_f32 v{g0}, 0, v{g0}
                v_max_f32 v{g1}, 0, v{g1}
                v_mul_f32 v{g0}, v{g0}, v{u0}
                v_mul_f32 v{g1}, v{g1}, v{u1}
                v_cvt_pk_bf16_f32 v{o}, v{g0}, v{g1}""".format(g0=g + 2 * p, g1=g + 2 * p + 1, u0=u + 2 * p, u1=u + 2 * p + 1, o=u + p if False else 142 + 2 * ((x * 3 + ft) % 8) + p))
            o = 142 + 2 * ((x * 3 + ft) % 8)
            a("buffer_store_dwordx2 v[%d:%d], v8, s[8:11], s%d offen offset:%d" % (o, o + 1, 56 + x, 32 * ft))
    a("s_endpgm")
    a.label("K3_LOADER")
    srd(a, 4, P_WG, 512 * 2752)
    srd(a, 12, P_WU, 512 * 2752)
    a("""s_sub_u32 s50, s44, 4               ; lw
    v_lshrrev_b32 v5, 4, v1""")
    for par in range(2):
        a("""v_add_u32 v6, %d, v5
        v_lshlrev_b32 v6, 1, v6
        v_xor_b32 v6, v6, v3
        v_lshlrev_b32 v6, 4, v6
        v_lshl_add_u32 v%d, v5, 12, v6""" % (4 * par, 10 + par))
    a("s_mov_b32 s52, 43691")
    for p in range(3):
        a("""s_mul_i32 s53, s50, 192
        s_add_u32 s53, s53, %d
        v_add_u32 v6, s53, v1               ; pos16
        v_mul_lo_u32 v7, v6, s52
        v_lshrrev_b32 v7, 19, v7            ; row
        v_mul_u32_u24 v8, 12, v7
        v_sub_u32 v6, v6, v8                ; c'
        v_bfe_u32 v8, v7, 2, 1
        v_lshlrev_b32 v8, 1, v8
        v_xor_b32 v6, v6, v8
        v_mul_u32_u24 v7, 2752, v7
        v_lshl_add_u32 v%d, v6, 4, v7""" % (64 * p, 12 + p))
    a("""s_lshl_b32 s52, s50, 16             ; lw*16 rows*4096
    s_lshl_b32 s53, s47, 1
    s_add_u32 s52, s52, s53
    s_add_u32 s52, s52, 0x%x              ; sA
    s_lshl_b32 s53, s48, 1                ; sB
    s_lshl_b32 s54, s50, 12               ; lds A off
    s_mul_i32 s55, s50, 3072              ; lds B off""" % HT)
    def issue(c):
        sb = (c % 4) * STG
        for p in range(4):
            a("s_add_u32 m0, s54, %d" % (sb + 1024 * p))
            a("s_add_u32 s56, s52, %d" % (c * 64 * 4096 + p * 16384))
            a("buffer_load_dwordx4 v%d, s[8:11], s56 offen lds" % (10 + (p & 1)))
        a("s_add_u32 s56, s53, %d" % (c * 64 * 2752))
        for mat in range(2):
            for p in range(3):
                a("s_add_u32 m0, s55, %d" % (sb + (GOFF if mat == 0 else UOFF3) + 1024 * p))
                a("s_nop 0")
                a("buffer_load_dwordx4 v%d, s[%d:%d], s56 offen lds" % (12 + p, 4 if mat == 0 else 12, 7 if mat == 0 else 15))
    for c in range(4): issue(c)
    waits = [30, 20, 20, 20, 20, 20, 10, 0]
    for c in range(8):
        a("s_waitcnt vmcnt(%d)" % waits[c])
        a("s_barrier")
        if c >= 1 and c + 3 < 8: issue(c + 3)
    a.label("K3_EXIT")
    a("s_endpgm")
    return kernel_header("k3_kernel") + a.text() + kernel_desc("k3_kernel", 240, 64)
```

```python
from common import *
K4_GRID = 256
STG = 32768
HOFF = 4 * STG
K4_LDS = HOFF + 8192
NCH = 11

def gen_k4():
    a = Asm()
    a("s_cmp_ge_u32 s2, %d" % K4_GRID)
    a("s_cbranch_scc1 K4_EXIT")
    load_ptrs(a)
    a("""v_and_b32 v1, 63, v0                ; lane
    v_lshrrev_b32 v2, 6, v0               ; wave
    v_and_b32 v3, 15, v0                  ; n
    v_readfirstlane_b32 s44, v2
    v_bfe_u32 v4, v0, 4, 2                ; g
    s_and_b32 s45, s2, 7                  ; xcd
    s_lshr_b32 s46, s2, 3                 ; local
    s_lshl_b32 s47, s45, 2
    s_and_b32 s48, s46, 3
    s_add_u32 s47, s47, s48               ; mt
    s_lshr_b32 s48, s46, 2                ; nt
    s_lshl_b32 s47, s47, 6                ; l0
    s_lshl_b32 s48, s48, 6                ; d0
    s_waitcnt lgkmcnt(0)""")
    srd(a, 8, P_WS, WS_LIMIT)
    a("s_cmp_ge_u32 s44, 4")
    a("s_cbranch_scc1 K4_LOADER")
    srd(a, 12, P_OUT, 2097152)
    a("""s_and_b32 s50, s44, 1               ; wl
    s_lshr_b32 s51, s44, 1                ; wd
    v_lshrrev_b32 v5, 2, v3               ; r
    v_and_b32 v6, 3, v3                   ; cc""")
    for ks in range(4):
        a("""v_xor_b32 v7, %d, v5
        v_lshlrev_b32 v7, 2, v7
        v_xor_b32 v8, v4, v6
        v_or_b32 v7, v7, v8
        v_lshlrev_b32 v7, 4, v7
        s_lshl_b32 s52, s50, 5
        v_add_u32 v8, s52, v3
        v_lshl_add_u32 v%d, v8, 8, v7""" % (ks, 10 + ks))
    a("""v_lshrrev_b32 v7, 1, v5
    v_and_b32 v8, 1, v4
    v_lshl_or_b32 v7, v8, 1, v7           ; s(k)
    v_lshl_add_u32 v8, v4, 3, v5          ; 8g + r""")
    for dt in range(2):
        a("""s_lshl_b32 s52, s51, 1
        s_add_u32 s52, s52, %d
        v_xor_b32 v9, s52, v7
        v_lshlrev_b32 v9, 5, v9
        v_lshl_add_u32 v9, v6, 3, v9
        v_lshl_add_u32 v9, v8, 7, v9
        v_add_u32 v%d, 16384, v9""" % (dt, 14 + dt))
    for r in range(16, 32):
        a("v_mov_b32 v%d, 0" % r)
    def acc(dt, lt): return 16 + 4 * (2 * dt + lt)
    FB = [32, 96]
    def reads(nks, fb):
        l = []
        for ks in range(nks):
            b = fb + 16 * ks
            for lt in range(2):
                l.append("ds_read_b128 v[%d:%d], v%d offset:%d" % (b + 4 * lt, b + 4 * lt + 3, 10 + ks, 4096 * lt))
            for dt in range(2):
                for rd in range(2):
                    r = b + 8 + 4 * dt + 2 * rd
                    l.append("ds_read_b64_tr_b16 v[%d:%d], v%d offset:%d" % (r, r + 1, 14 + dt, (32 * ks + 4 * rd) * 128))
        return l
    def mfmas(nks, fb):
        l = []
        for ks in range(nks):
            b = fb + 16 * ks
            for dt in range(2):
                for lt in range(2):
                    c = acc(dt, lt); w = b + 8 + 4 * dt; h = b + 4 * lt
                    l.append("v_mfma_f32_16x16x32_bf16 v[%d:%d], v[%d:%d], v[%d:%d], v[%d:%d]" % (c, c + 3, w, w + 3, h, h + 3, c, c + 3))
        return l
    def nks(c): return 4 if c < NCH - 1 else 3
    for c in range(NCH):
        a("s_barrier")
        rd = reads(nks(c), FB[c & 1])
        mf = mfmas(nks(c - 1), FB[(c - 1) & 1]) if c > 0 else []
        i = j = 0
        while i < len(rd) or j < len(mf):
            for _ in range(3):
                if i < len(rd): a(rd[i]); i += 1
            for _ in range(2):
                if j < len(mf): a(mf[j]); j += 1
        if c < NCH - 1:
            d = STG if (c + 1) % 4 else -3 * STG
            for r in [10, 11, 12, 13, 14, 15]:
                if d > 0: a("v_add_u32 v%d, %d, v%d" % (r, d, r))
                else: a("v_subrev_u32 v%d, %d, v%d" % (r, -d, r))
        a("s_waitcnt lgkmcnt(0)")
    a("""v_lshrrev_b32 v7, 1, v5
    v_lshl_add_u32 v7, v4, 1, v7
    v_and_b32 v7, 3, v7
    v_lshl_add_u32 v8, v4, 2, v5          ; 4g + r
    s_lshl_b32 s52, s51, 5
    v_add_u32 v8, s52, v8""")
    for lt in range(2):
        a("""s_lshl_b32 s52, s50, 1
        s_add_u32 s52, s52, %d
        v_xor_b32 v9, s52, v7
        v_lshlrev_b32 v9, 5, v9
        v_lshl_add_u32 v9, v6, 3, v9
        v_lshl_add_u32 v9, v8, 7, v9
        v_add_u32 v%d, 0x%x, v9""" % (lt, 10 + lt, HOFF))
    for m in mfmas(3, FB[(NCH - 1) & 1]): a(m)
    for dt in range(2):
        for lt in range(2):
            r = 160 + 2 * (2 * dt + lt)
            a("ds_read_b64_tr_b16 v[%d:%d], v%d offset:%d" % (r, r + 1, 10 + lt, 2048 * dt))
    a("""s_lshl_b32 s52, s50, 5
    s_add_u32 s52, s52, s47
    v_add_u32 v8, s52, v3
    v_lshlrev_b32 v8, 10, v8
    v_lshl_add_u32 v8, v4, 3, v8
    s_lshl_b32 s52, s51, 5
    s_add_u32 s52, s52, s48
    s_lshl_b32 s52, s52, 1
    s_add_u32 s53, s52, 16384
    s_mov_b32 s60, 0xffff0000
    s_nop 4
    s_waitcnt lgkmcnt(0)""")
    for dt in range(2):
        for lt in range(2):
            c = acc(dt, lt); h = 160 + 2 * (2 * dt + lt)
            for p in range(2):
                a("""v_cvt_pk_bf16_f32 v{c0}, v{c0}, v{c1}
                v_lshlrev_b32 v170, 16, v{h}
                v_and_b32 v171, s60, v{h}
                v_and_b32 v{c1}, s60, v{c0}
                v_lshlrev_b32 v{c0}, 16, v{c0}
                v_add_f32 v{c0}, v{c0}, v170
                v_add_f32 v{c1}, v{c1}, v171
                v_cvt_pk_bf16_f32 v{h}, v{c0}, v{c1}""".format(c0=c + 2 * p, c1=c + 2 * p + 1, h=h + p))
            a("buffer_store_dwordx2 v[%d:%d], v8, s[12:15], s%d offen offset:%d" % (h, h + 1, 52 + lt, 32 * dt))
    a("s_endpgm")
    a.label("K4_LOADER")
    srd(a, 4, P_WD, 1376 * 1024)
    a("""s_sub_u32 s50, s44, 4               ; lw
    v_lshrrev_b32 v5, 4, v1               ; lane>>4
    v_lshrrev_b32 v6, 3, v1               ; lane>>3
    v_and_b32 v7, 7, v1""")
    for p in range(4):
        a("""v_add_u32 v8, %d, v5
        v_xor_b32 v9, v8, v3
        v_mul_u32_u24 v8, 2752, v8
        v_lshl_add_u32 v%d, v9, 4, v8""" % (4 * p, 10 + p))
    for par in range(2):
        a("""v_and_b32 v8, 1, v5
        v_or_b32 v8, %d, v8
        v_lshlrev_b32 v8, 1, v8
        v_xor_b32 v8, v8, v7
        v_lshlrev_b32 v8, 4, v8
        v_lshl_add_u32 v%d, v6, 10, v8""" % (2 * par, 14 + par))
    a("""v_lshlrev_b32 v8, 1, v5
    v_xor_b32 v8, v8, v7
    v_lshlrev_b32 v8, 4, v8
    v_lshl_add_u32 v16, v6, 12, v8        ; h^T voffset
    s_lshl_b32 s52, s50, 4
    s_add_u32 s52, s52, s47
    s_mul_i32 s52, s52, 2752
    s_add_u32 s52, s52, 0x%x              ; sA
    s_lshl_b32 s53, s50, 15               ; lw*32 rows*1024
    s_lshl_b32 s54, s48, 1
    s_add_u32 s53, s53, s54               ; sB
    s_lshl_b32 s54, s50, 12               ; lds off (lw*4096)
    s_lshl_b32 s55, s50, 4
    s_add_u32 s55, s55, s48
    s_lshl_b32 s55, s55, 12
    s_lshl_b32 s56, s47, 1
    s_add_u32 s55, s55, s56
    s_add_u32 s55, s55, 0x%x              ; h src
    s_lshl_b32 s56, s50, 11""" % (HM, HT))
    for p in range(2):
        a("s_add_u32 m0, s56, %d" % (HOFF + 1024 * p))
        a("s_add_u32 s57, s55, %d" % (p * 8 * 4096))
        a("buffer_load_dwordx4 v16, s[8:11], s57 offen lds")
    def issue(c):
        sb = (c % 4) * STG
        a("s_add_u32 s57, s52, %d" % (c * 256))
        for p in range(4):
            a("s_add_u32 m0, s54, %d" % (sb + 1024 * p))
            a("s_nop 0")
            a("buffer_load_dwordx4 v%d, s[8:11], s57 offen lds" % (10 + p))
        for p in range(4):
            a("s_add_u32 m0, s54, %d" % (sb + 16384 + 1024 * p))
            a("s_add_u32 s57, s53, %d" % (c * 128 * 1024 + p * 8192))
            a("buffer_load_dwordx4 v%d, s[4:7], s57 offen lds" % (14 + (p & 1)))
    for c in range(4): issue(c)
    for c in range(NCH):
        last_issued = min(NCH - 1, max(3, c + 2))
        a("s_waitcnt vmcnt(%d)" % (8 * (last_issued - c)))
        a("s_barrier")
        if c >= 1 and c + 3 < NCH: issue(c + 3)
    a.label("K4_EXIT")
    a("s_endpgm")
    return kernel_header("k4_kernel") + a.text() + kernel_desc("k4_kernel", 176, 64)
```

```python
import sys, os
sys.path.insert(0, os.path.dirname(__file__))
from common import *
import k1
HDR = open(os.path.join(os.path.dirname(__file__), "..", "cdna_kernels", "sequential_preLN__ssm_conv_s4d__glu_gated_reglu__prompt.s.ref")).read().split("; Override launch")[0]
def build(n=4):
    launches = ["; @launch kernel=k1_kernel grid=(%d,1,1) block=(256,1,1) lds=%d" % (k1.K1_GRID, k1.K1_LDS)]
    body = [k1.gen_k1()]
    if n >= 2:
        import k2
        launches.append("; @launch kernel=k2_kernel grid=(%d,1,1) block=(256,1,1) lds=%d" % (k2.K2_GRID, k2.K2_LDS)); body.append(k2.gen_k2())
    if n >= 3:
        import k3
        launches.append("; @launch kernel=k3_kernel grid=(%d,1,1) block=(512,1,1) lds=%d" % (k3.K3_GRID, k3.K3_LDS)); body.append(k3.gen_k3())
    if n >= 4:
        import k4
        launches.append("; @launch kernel=k4_kernel grid=(%d,1,1) block=(512,1,1) lds=%d" % (k4.K4_GRID, k4.K4_LDS)); body.append(k4.gen_k4())
    return HDR + "\n".join(launches) + "\n.amdgcn_target \"amdgcn-amd-amdhsa--gfx950\"\n.text\n" + "".join(body)
if __name__ == "__main__":
    n = int(sys.argv[1]) if len(sys.argv) > 1 else 4
    out = sys.argv[2] if len(sys.argv) > 2 else "sequential_preLN__ssm_conv_s4d__glu_gated_reglu__prompt.s"
    open(out, "w").write(build(n))
```

```python
from common import *
GRID = 256
LDS = 163840
STATS = 0
LOG2E = 0x3fb8aa3b
INV2PI = 0x3e22f983
S = 4160
UO = 4 * S
XO = UO + 5120
CHS = XO + 4096
TABB = 2 * CHS
KNAME = "sequential_preLN__ssm_conv_s4d__glu_gated_reglu__prompt_kernel"
cnt = [0]
def uniq(p):
    cnt[0] += 1
    return "%s_%d" % (p, cnt[0])

def row_reduce16(a, vs):
    for pat in ("quad_perm:[1,0,3,2]", "quad_perm:[2,3,0,1]", "row_half_mirror", "row_mirror"):
        if len(vs) < 3: a("s_nop 1")
        for v in vs:
            a("v_add_f32_dpp v%d, v%d, v%d %s row_mask:0xf bank_mask:0xf" % (v, v, v, pat))
def allreduce64(a, vs, tmps):
    row_reduce16(a, vs)
    for ins in ("v_permlane16_swap_b32", "v_permlane32_swap_b32"):
        for v, t in zip(vs, tmps): a("v_mov_b32 v%d, v%d" % (t, v))
        a("s_nop 1")
        for v, t in zip(vs, tmps): a("%s v%d, v%d" % (ins, v, t))
        for v, t in zip(vs, tmps): a("v_add_f32 v%d, v%d, v%d" % (v, v, t))

def publish(a, val):
    l = uniq("PUB")
    a("""s_waitcnt vmcnt(0) lgkmcnt(0)
    s_barrier
    s_cmp_lg_u32 s44, 0
    s_cbranch_scc1 %s
    s_mov_b64 exec, 1
    v_mov_b32 v5, s45
    v_mov_b32 v6, %d
    buffer_store_byte v6, v5, s[68:71], 0 offen sc1
    s_mov_b64 exec, -1""" % (l, val))
    a.label(l)

def poll(a, wave, bit, group):
    l = uniq("POLL"); e = uniq("POLLE")
    a("s_cmp_lg_u32 s44, %d" % wave)
    a("s_cbranch_scc1 %s" % e)
    if group:
        a("""v_and_b32 v5, 3, v1
        v_lshlrev_b32 v5, 2, v5
        s_and_b32 s50, s45, 0xf0
        v_add_u32 v5, s50, v5""")
    else:
        a("v_lshlrev_b32 v5, 2, v1")
    a("s_mov_b32 s50, 0x%x" % (0x01010101 << bit))
    a("s_mov_b32 s51, 0")
    a.label(l)
    a("""buffer_load_dword v6, v5, s[68:71], 0 offen sc1
    s_waitcnt vmcnt(0)
    v_and_b32 v6, s50, v6
    v_cmp_ne_u32 vcc, s50, v6
    s_add_u32 s51, s51, 1
    s_nop 3
    s_cmp_eq_u64 vcc, 0
    s_cbranch_scc1 %s
    s_cmp_gt_u32 s51, 0x40000
    s_cbranch_scc1 %s
    s_sleep 2
    s_branch %s""" % (e, e, l))
    a.label(e)
    a("s_barrier")

def gen():
    a = Asm()
    a("s_cmp_ge_u32 s2, %d" % GRID)
    a("s_cbranch_scc1 M_EXIT")
    load_ptrs(a)
    a("""v_and_b32 v1, 63, v0                ; lane
    v_lshrrev_b32 v2, 6, v0               ; wave
    v_and_b32 v3, 15, v0                  ; n
    v_readfirstlane_b32 s44, v2
    v_bfe_u32 v4, v0, 4, 2                ; g
    s_and_b32 s50, s2, 7                  ; xcd
    s_lshr_b32 s51, s2, 3                 ; local
    s_and_b32 s49, s50, 1
    s_lshl_b32 s49, s49, 3
    s_and_b32 s52, s51, 7
    s_add_u32 s49, s49, s52               ; mt
    s_lshr_b32 s52, s50, 1
    s_lshl_b32 s52, s52, 2
    s_lshr_b32 s53, s51, 3
    s_add_u32 s52, s52, s53               ; ng
    s_lshl_b32 s45, s49, 4
    s_add_u32 s45, s45, s52               ; q
    s_lshl_b32 s46, s50, 5
    s_add_u32 s46, s46, s51               ; cp
    s_lshl_b32 s47, s49, 7                ; l0
    s_mul_i32 s48, s52, 43
    s_add_u32 s48, s48, 4
    s_lshr_b32 s48, s48, 3
    s_min_u32 s48, s48, 80
    s_lshl_b32 s48, s48, 4                ; f0
    s_lshr_b32 s72, s52, 3
    s_lshl_b32 s72, s72, 6
    s_add_u32 s72, s72, s47               ; P4 l0
    s_and_b32 s73, s52, 7
    s_lshl_b32 s73, s73, 6                ; P4 d0
    s_lshr_b32 s74, s44, 2                ; ch
    s_mul_i32 s75, s74, %d                ; KB
    s_lshl_b32 s76, s46, 1
    s_add_u32 s76, s76, s74               ; channel d
    s_waitcnt lgkmcnt(0)""" % CHS)
    srd(a, 8, P_WS, WS_LIMIT)
    srd(a, 68, P_DBG, 256)
    srd(a, 4, P_X, 2097152)
    a("""v_lshlrev_b32 v5, 4, v1
    s_lshl_b32 s50, s2, 3
    s_add_u32 s50, s50, s44               ; row
    s_lshl_b32 s51, s50, 10
    buffer_load_dwordx4 v[8:11], v5, s[4:7], s51 offen
    v_and_b32 v6, 127, v0                 ; mode
    s_lshl_b32 s52, s76, 8
    v_lshl_add_u32 v7, v6, 1, s52
    s_lshl_b32 s52, s76, 1
    v_mov_b32 v21, s52
    global_load_ushort v12, v7, s[%d:%d]
    global_load_ushort v13, v7, s[%d:%d]
    global_load_ushort v14, v7, s[%d:%d]
    global_load_ushort v15, v7, s[%d:%d]
    global_load_ushort v16, v21, s[%d:%d]""" % (P_LAR, P_LAR + 1, P_AIM, P_AIM + 1, P_CR, P_CR + 1, P_CI, P_CI + 1, P_LDT, P_LDT + 1))
    a("s_mov_b32 s60, 0xffff0000")
    a("s_waitcnt vmcnt(5)")
    for q in range(4):
        a("v_lshlrev_b32 v%d, 16, v%d" % (24 + 2 * q, 8 + q))
        a("v_and_b32 v%d, s60, v%d" % (25 + 2 * q, 8 + q))
    a("""v_add_f32 v32, v24, v25
    v_add_f32 v33, v26, v27
    v_add_f32 v34, v28, v29
    v_add_f32 v35, v30, v31
    v_add_f32 v32, v32, v33
    v_add_f32 v34, v34, v35
    v_add_f32 v32, v32, v34""")
    allreduce64(a, [32], [33])
    a("v_mul_f32 v32, 0x3b000000, v32")
    for q in range(8):
        a("v_sub_f32 v%d, v%d, v32" % (24 + q, 24 + q))
    a("v_mul_f32 v34, v24, v24")
    a("v_mul_f32 v35, v25, v25")
    for q in range(2, 8, 2):
        a("v_fmac_f32 v34, v%d, v%d" % (24 + q, 24 + q))
        a("v_fmac_f32 v35, v%d, v%d" % (25 + q, 25 + q))
    a("v_add_f32 v34, v34, v35")
    allreduce64(a, [34], [33])
    a("""v_mul_f32 v34, 0x3b000000, v34
    v_cvt_pk_bf16_f32 v32, v32, v34
    v_and_b32 v34, s60, v32
    v_add_f32 v34, 0x3727c5ac, v34
    v_cvt_pk_bf16_f32 v34, v34, v34
    v_lshlrev_b32 v34, 16, v34
    v_sqrt_f32 v34, v34
    s_nop 0
    v_cvt_pk_bf16_f32 v34, v34, v34
    v_and_b32 v32, 0xffff, v32
    v_lshl_or_b32 v32, v34, 16, v32
    v_mov_b32 v33, 0
    s_lshl_b32 s51, s50, 2
    s_mov_b64 exec, 1
    buffer_store_dword v32, v33, s[8:11], s51 offen sc1
    s_mov_b64 exec, -1""")
    publish(a, 1)
    a("""v_lshlrev_b32 v7, 10, v0
    s_lshl_b32 s52, s46, 2""")
    for j in range(4):
        a("buffer_load_dword v%d, v7, s[4:7], s52 offen" % (240 + j))
        if j < 3: a("s_add_u32 s52, s52, 524288")
    a("s_load_dword s77, s[%d:%d], s46" % (P_DSK, P_DSK + 1) if False else "s_lshl_b32 s52, s46, 2\ns_load_dword s77, s[%d:%d], s52" % (P_DSK, P_DSK + 1))
    a("""s_mov_b32 s78, -1
    s_cmp_eq_u32 s44, 7
    s_cselect_b32 s78, s2, s78
    s_add_u32 s52, s2, 256
    s_cmp_lt_u32 s2, 88
    s_cselect_b32 s52, s52, -1
    s_cmp_eq_u32 s44, 6
    s_cselect_b32 s78, s52, s78           ; unit or -1
    s_cmp_eq_u32 s78, -1
    s_cbranch_scc1 M_NOCS1
    s_cmp_ge_u32 s78, 172
    s_cselect_b32 s12, s%d, s%d
    s_cselect_b32 s13, s%d, s%d
    s_cselect_b32 s52, 172, 0
    s_cselect_b32 s79, 5632, 0
    s_sub_u32 s52, s78, s52               ; col unit
    s_and_b32 s13, s13, 0xffff
    s_mov_b32 s14, %d
    s_mov_b32 s15, 0x00020000
    s_lshl_b32 s53, s52, 5
    s_add_u32 s79, s79, s53
    s_add_u32 s79, s79, 0x%x              ; cs dst
    s_lshl_b32 s52, s52, 4
    v_mul_u32_u24 v7, 2752, v1""" % (P_WU, P_WG, P_WU + 1, P_WG + 1, 512 * 2752, CS))
    for j in range(8):
        a("buffer_load_dwordx4 v[%d:%d], v7, s[12:15], s52 offen" % (208 + 4 * j, 211 + 4 * j))
        if j < 7: a("s_add_u32 s52, s52, %d" % (64 * 2752))
    a.label("M_NOCS1")
    srd(a, 80, P_WG, 512 * 2752)
    srd(a, 84, P_WU, 512 * 2752)
    a("s_and_b32 s88, s44, 3               ; lw")
    a("""s_lshl_b32 s89, s48, 1                ; sB
    s_mul_i32 s90, s88, 3072""")
    a("s_mov_b32 s52, 43691")
    for p in range(3):
        a("""s_mul_i32 s53, s88, 192
        s_add_u32 s53, s53, %d
        v_add_u32 v6, s53, v1
        v_mul_lo_u32 v7, v6, s52
        v_lshrrev_b32 v7, 19, v7
        v_mul_u32_u24 v8, 12, v7
        v_sub_u32 v6, v6, v8
        v_bfe_u32 v8, v7, 2, 1
        v_lshlrev_b32 v8, 1, v8
        v_xor_b32 v6, v6, v8
        v_mul_u32_u24 v7, 2752, v7
        v_lshl_add_u32 v%d, v6, 4, v7""" % (64 * p, 244 + p))
    a("s_cmp_lt_u32 s44, 4")
    a("s_cbranch_scc1 M_NOPF")
    def issueB3(c):
        sb = 65536 + (c % 4) * 24576
        a("s_add_u32 s56, s89, %d" % (c * 64 * 2752))
        for mat in range(2):
            for p in range(3):
                a("s_add_u32 m0, s90, %d" % (sb + 12288 * mat + 1024 * p))
                a("s_nop 0")
                a("buffer_load_dwordx4 v%d, s[%d:%d], s56 offen lds" % (244 + p, 80 + 4 * mat, 83 + 4 * mat))
    for c in range(4): issueB3(c)
    a.label("M_NOPF")
    PT, HTAB = UO + 1024, XO
    a("""v_and_b32 v5, 255, v0               ; t256
    v_and_b32 v10, 7, v3
    v_lshrrev_b32 v18, 3, v3
    v_lshl_add_u32 v10, v18, 7, v10       ; H0
    v_lshrrev_b32 v18, 2, v3
    v_lshlrev_b32 v18, 7, v18
    v_and_b32 v19, 3, v3
    v_lshl_add_u32 v18, v19, 1, v18
    v_add_u32 v18, 256, v18
    v_subrev_u32 v19, 8, v3
    v_lshrrev_b32 v19, 1, v19
    v_lshlrev_b32 v19, 7, v19
    v_and_b32 v20, 1, v3
    v_lshl_add_u32 v19, v20, 2, v19
    v_add_u32 v19, 512, v19
    v_cmp_gt_u32 vcc, 8, v3
    v_lshlrev_b32 v17, 7, v3
    v_add_u32 v17, 1024, v17              ; H2
    v_cndmask_b32 v11, v19, v18, vcc      ; H1
    v_lshl_add_u32 v18, v3, 2, s75
    v_lshlrev_b32 v19, 1, v10
    v_lshlrev_b32 v20, 1, v11
    v_lshlrev_b32 v21, 1, v17
    ds_write_b32 v18, v19 offset:%d
    ds_write_b32 v18, v20 offset:%d
    ds_write_b32 v18, v21 offset:%d
    v_lshlrev_b32 v9, 3, v3
    v_cvt_f32_u32 v10, v10
    v_cvt_f32_u32 v11, v11
    v_cvt_f32_u32 v8, v17
    v_cvt_f32_u32 v9, v9
    s_mov_b32 s52, 0x%x
    s_mov_b32 s53, 0x%x
    v_lshlrev_b32 v12, 16, v12
    v_lshlrev_b32 v13, 16, v13
    v_lshlrev_b32 v14, 16, v14
    v_lshlrev_b32 v15, 16, v15
    v_lshlrev_b32 v16, 16, v16
    v_mul_f32 v12, s52, v12
    v_mul_f32 v16, s52, v16
    v_exp_f32 v12, v12
    v_exp_f32 v16, v16
    s_nop 0
    v_cvt_pk_bf16_f32 v12, v12, v16
    v_and_b32 v16, 0xffff0000, v12
    v_lshlrev_b32 v12, 16, v12
    v_mul_f32 v12, v12, v16
    v_mul_f32 v13, v13, v16
    v_mul_f32 v14, v14, v16
    v_mul_f32 v15, v15, v16
    v_mul_f32 v20, s52, v12
    v_sub_f32 v20, 0, v20
    v_mul_f32 v21, s53, v13
    v_add_f32 v22, v14, v14
    v_add_f32 v23, v15, v15
    v_and_b32 v6, 127, v0
    v_lshl_add_u32 v6, v6, 4, s75
    ds_write_b128 v6, v[20:23] offset:%d
    s_and_b32 s52, s44, 3
    s_lshl_b32 s52, s52, 9
    s_add_u32 s52, s52, s75
    v_lshl_add_u32 v6, v4, 4, s52
    s_waitcnt lgkmcnt(0)
    s_barrier""" % (HTAB, HTAB + 64, HTAB + 128, LOG2E, INV2PI, PT))
    for q in range(8):
        a("ds_read_b128 v[%d:%d], v6 offset:%d" % (24 + 4 * q, 27 + 4 * q, PT + 64 * q))
    for r in range(12):
        a("v_mov_b32 v%d, 0" % (56 + r))
    for q in range(8):
        P = 24 + 4 * q
        a("s_waitcnt lgkmcnt(%d)" % (7 - q))
        o = 8 * (q & 1) + 80
        srcs = [10, 11, 8, 9]
        for t in range(4):
            a("v_mul_f32 v%d, v%d, v%d" % (68 + t, P, srcs[t]))
            a("v_mul_f32 v%d, v%d, v%d" % (72 + t, P + 1, srcs[t]))
        for t in range(4):
            a("v_exp_f32 v%d, v%d" % (68 + t, 68 + t))
            a("v_fract_f32 v%d, v%d" % (72 + t, 72 + t))
        for t in range(4):
            a("v_cos_f32 v%d, v%d" % (76 + t, 72 + t))
            a("v_sin_f32 v%d, v%d" % (72 + t, 72 + t))
        for t in range(3):
            a("v_mul_f32 v%d, v%d, v%d" % (96 + t, 68 + t, P + 2))
            a("v_mul_f32 v%d, v%d, v%d" % (68 + t, 68 + t, P + 3))
        a("v_mul_f32 v%d, v71, v79" % (o + 6))
        a("v_mul_f32 v%d, v71, v75" % (o + 7))
        for t in range(3):
            a("v_mul_f32 v%d, v%d, v%d" % (100 + t, 68 + t, 72 + t))
            a("v_mul_f32 v%d, v%d, v%d" % (104 + t, 68 + t, 76 + t))
        for t in range(3):
            a("v_fma_f32 v%d, v%d, v%d, -v%d" % (o + 2 * t, 96 + t, 76 + t, 100 + t))
            a("v_fma_f32 v%d, -v%d, v%d, -v%d" % (o + 2 * t + 1, 96 + t, 72 + t, 104 + t))
        a("s_nop 1")
        for t in range(3):
            a("v_mfma_f32_16x16x4_f32 v[%d:%d], v%d, v%d, v[%d:%d]" % (56 + 4 * t, 59 + 4 * t, o + 2 * t, o + 6, 56 + 4 * t, 59 + 4 * t))
        for t in range(3):
            a("v_mfma_f32_16x16x4_f32 v[%d:%d], v%d, v%d, v[%d:%d]" % (56 + 4 * t, 59 + 4 * t, o + 2 * t + 1, o + 7, 56 + 4 * t, 59 + 4 * t))
    a("""s_and_b32 s52, s44, 3
    s_mul_i32 s52, s52, 3072
    s_add_u32 s52, s52, s75
    v_lshl_add_u32 v6, v1, 4, s52         ; partial write addr
    v_lshl_add_u32 v7, v5, 4, s75         ; KB + t*16
    v_lshrrev_b32 v8, 6, v5
    v_lshlrev_b32 v8, 6, v8
    v_lshl_add_u32 v8, v4, 4, v8
    v_add_u32 v8, s75, v8                 ; htab addr
    s_mul_i32 s53, s74, 6144
    s_add_u32 s53, s53, %d                ; TAB
    v_lshl_add_u32 v9, v3, 4, s53         ; TAB + 16n
    s_nop 7
    s_nop 3""" % TABB)
    for t in range(3):
        a("ds_write_b128 v6, v[%d:%d] offset:%d" % (56 + 4 * t, 59 + 4 * t, 1024 * t))
    a("""v_lshlrev_b32 v6, 3, v5
    v_sub_u32 v6, 2047, v6""")
    for e in range(12):
        a("v_subrev_u32 v%d, %d, v6" % (24 + e, min(e, 10)))
        a("v_cvt_f32_i32 v%d, v%d" % (24 + e, 24 + e))
    for e in range(0, 12, 2):
        a("v_cvt_pk_bf16_f32 v%d, v%d, v%d" % (40 + e // 2, 24 + e, 25 + e))
    for e in range(11):
        if e % 2 == 0: a("v_lshlrev_b32 v%d, 16, v%d" % (24 + e, 40 + e // 2))
        else: a("v_and_b32 v%d, 0xffff0000, v%d" % (24 + e, 40 + e // 2))
    for e in range(11):
        a("v_cvt_u32_f32 v%d, v%d" % (24 + e, 24 + e))
        a("v_lshl_add_u32 v%d, v%d, 1, s53" % (24 + e, 24 + e))
    a("""s_waitcnt lgkmcnt(0)
    s_barrier
    v_cmp_gt_u32 vcc, 192, v5
    s_and_saveexec_b64 s[54:55], vcc
    s_cbranch_execz M_KG_C2""")
    for w in range(4):
        a("ds_read_b128 v[%d:%d], v7 offset:%d" % (56 + 4 * w, 59 + 4 * w, 3072 * w))
    a("ds_read_b128 v[72:75], v8 offset:%d" % HTAB)
    a("s_waitcnt lgkmcnt(0)")
    for r in range(4):
        a("v_add_f32 v%d, v%d, v%d" % (56 + r, 56 + r, 60 + r))
        a("v_add_f32 v%d, v%d, v%d" % (64 + r, 64 + r, 68 + r))
    for r in range(4):
        a("v_add_f32 v%d, v%d, v%d" % (56 + r, 56 + r, 64 + r))
        a("v_add_u32 v%d, v%d, v9" % (72 + r, 72 + r))
    a("""v_cvt_pk_bf16_f32 v56, v56, v57
    v_cvt_pk_bf16_f32 v58, v58, v59
    ds_write_b16 v72, v56
    ds_write_b16_d16_hi v73, v56
    ds_write_b16 v74, v58
    ds_write_b16_d16_hi v75, v58""")
    a.label("M_KG_C2")
    a("""s_mov_b64 exec, s[54:55]
    s_waitcnt lgkmcnt(0)
    s_barrier""")
    for e in range(11):
        a("ds_read_u16 v%d, v%d" % (44 + e, 24 + e))
    a("""v_mov_b32 v64, 0
    v_mov_b32 v65, 0
    v_mov_b32 v66, 0
    v_mov_b32 v67, 0
    v_cmp_eq_u32 vcc, 255, v5
    v_lshl_add_u32 v8, v1, 4, s75         ; KB + lane*16 (u pad zero)
    v_lshrrev_b32 v9, 2, v1
    v_mul_u32_u24 v9, %d, v9
    v_and_b32 v10, 3, v1
    v_lshl_add_u32 v9, v10, 4, v9
    v_add_u32 v9, s75, v9
    s_waitcnt lgkmcnt(0)
    v_cndmask_b32 v52, v52, v64, vcc
    v_cndmask_b32 v53, v53, v64, vcc
    v_cndmask_b32 v54, v54, v64, vcc""" % S)
    for c in range(4):
        for j in range(4):
            a("v_lshl_or_b32 v%d, v%d, 16, v%d" % (68 + 4 * c + j, 45 + c + 2 * j, 44 + c + 2 * j))
        a("ds_write_b128 v7, v[%d:%d] offset:%d" % (68 + 4 * c, 71 + 4 * c, c * S))
    a("""ds_write_b128 v8, v[64:67] offset:%d
    v_cmp_gt_u32 vcc, 16, v1
    s_and_saveexec_b64 s[54:55], vcc
    ds_write_b128 v9, v[64:67] offset:4096
    s_mov_b64 exec, s[54:55]""" % UO)
    a("s_cmp_eq_u32 s78, -1")
    a("s_cbranch_scc1 M_NOCS2")
    a("s_waitcnt vmcnt(24)")
    for j in range(8):
        for k in range(4):
            s_ = 208 + 4 * j + k
            if j == 0:
                a("v_lshlrev_b32 v%d, 16, v%d" % (24 + 2 * k, s_))
                a("v_and_b32 v%d, s60, v%d" % (25 + 2 * k, s_))
            else:
                a("v_lshlrev_b32 v32, 16, v%d" % s_)
                a("v_and_b32 v33, s60, v%d" % s_)
                a("v_add_f32 v%d, v%d, v32" % (24 + 2 * k, 24 + 2 * k))
                a("v_add_f32 v%d, v%d, v33" % (25 + 2 * k, 25 + 2 * k))
    allreduce64(a, list(range(24, 32)), list(range(32, 40)))
    a("""v_mov_b32 v33, 0
    s_mov_b64 exec, 1
    buffer_store_dwordx4 v[24:27], v33, s[8:11], s79 offen sc1
    buffer_store_dwordx4 v[28:31], v33, s[8:11], s79 offen offset:16 sc1
    s_mov_b64 exec, -1""")
    a.label("M_NOCS2")
    poll(a, 0, 0, False)
    a("v_lshlrev_b32 v5, 2, v0")
    for j in range(4):
        a("buffer_load_dword v%d, v5, s[8:11], 0 offen offset:%d sc1" % (8 + j, 2048 * j) if j < 2 else
          "s_mov_b32 s52, %d\nbuffer_load_dword v%d, v5, s[8:11], s52 offen sc1" % (2048 * j, 8 + j))
    a("v_lshlrev_b32 v6, 1, v0")
    for j in range(4):
        x = 240 + j
        a("ds_write_b16 v6, v%d offset:%d" % (x, XO + 1024 * j))
        a("ds_write_b16_d16_hi v6, v%d offset:%d" % (x, CHS + XO + 1024 * j))
    for j in range(4):
        x = 240 + j; st = 8 + j
        a("""s_waitcnt vmcnt({w})
        v_and_b32 v12, s60, v{st}
        v_rcp_f32 v12, v12
        v_lshlrev_b32 v13, 16, v{st}
        v_lshlrev_b32 v14, 16, v{x}
        v_and_b32 v15, s60, v{x}
        v_sub_f32 v14, v14, v13
        v_sub_f32 v15, v15, v13
        v_cvt_pk_bf16_f32 v14, v14, v15
        v_and_b32 v15, s60, v14
        v_lshlrev_b32 v14, 16, v14
        v_mul_f32 v14, v14, v12
        v_mul_f32 v15, v15, v12
        v_cvt_pk_bf16_f32 v{o}, v14, v15
        ds_write_b16 v6, v{o} offset:{o0}
        ds_write_b16_d16_hi v6, v{o} offset:{o1}""".format(w=3 - j, st=st, x=x, o=16 + j, o0=UO + 1024 + 1024 * j, o1=CHS + UO + 1024 + 1024 * j))
    a("""s_bfe_u32 s50, s44, 0x10001           ; mt
    s_and_b32 s51, s44, 1                 ; hf
    v_and_b32 v14, 3, v3
    v_sub_u32 v14, 3, v14
    v_mul_u32_u24 v14, %d, v14
    v_lshrrev_b32 v15, 2, v3
    v_lshlrev_b32 v15, 3, v15
    v_sub_u32 v14, v14, v15
    v_lshl_add_u32 v14, v4, 4, v14
    s_lshl_b32 s52, s51, 9
    s_sub_u32 s53, s75, s52
    s_lshl_b32 s54, s50, 5
    s_sub_u32 s54, s53, s54
    s_add_u32 s54, s54, %d
    v_add_u32 v14, s54, v14               ; vA
    v_lshlrev_b32 v15, 6, v3
    v_lshl_add_u32 v15, v4, 4, v15
    s_add_u32 s53, s53, %d
    v_add_u32 v15, s53, v15               ; vB""" % (S, 4088 - 448 - 3072, UO + 1024 - 448))
    for r in range(16):
        a("v_mov_b32 v%d, 0" % (16 + r))
    a("""s_waitcnt lgkmcnt(0)
    s_barrier""")
    FB = [32, 64]
    def cloads(t, fb):
        l = []
        for q in range(4):
            l.append("ds_read_b128 v[%d:%d], v15 offset:%d" % (fb + 4 * q, fb + 4 * q + 3, 64 * (7 - t) + 1024 * q))
        for j in range(4):
            r = fb + 16 + 4 * j
            off = 64 * (7 - t) + 1024 * (3 - j)
            l.append("ds_read_b64 v[%d:%d], v14 offset:%d" % (r, r + 1, off))
            l.append("ds_read_b64 v[%d:%d], v14 offset:%d" % (r + 2, r + 3, off + 8))
        return l
    for l in cloads(0, FB[0]): a(l)
    for t in range(8):
        fb = FB[t & 1]
        a("s_waitcnt lgkmcnt(0)")
        mf = []
        for j in range(4):
            for nt in range(j, 4):
                r = fb + 16 + 4 * j; b = fb + 4 * (nt - j); c = 16 + 4 * nt
                mf.append("v_mfma_f32_16x16x32_bf16 v[%d:%d], v[%d:%d], v[%d:%d], v[%d:%d]" % (c, c + 3, r, r + 3, b, b + 3, c, c + 3))
        ld = cloads(t + 1, FB[(t + 1) & 1]) if t < 7 else []
        for k in range(12):
            if k < len(ld): a(ld[k])
            if k < 10: a(mf[k])
    a("""s_and_b32 s52, s44, 3
    s_lshl_b32 s53, s52, 11
    s_add_u32 s53, s53, s75
    s_xor_b32 s52, s52, 1
    s_lshl_b32 s52, s52, 11
    s_add_u32 s52, s52, s75
    v_lshl_add_u32 v7, v1, 4, s53         ; write
    v_lshl_add_u32 v8, v1, 4, s52         ; read
    v_lshlrev_b32 v9, 6, v3
    v_lshl_add_u32 v9, v4, 3, v9
    s_lshl_b32 s52, s51, 11
    s_lshl_b32 s53, s50, 5
    s_add_u32 s52, s52, s53
    s_add_u32 s52, s52, s75
    v_add_u32 v9, s52, v9
    s_lshl_b32 s52, s74, 4
    s_lshr_b32 s77, s77, s52
    s_lshl_b32 s77, s77, 16               ; D_skip
    s_barrier
    s_cmp_eq_u32 s51, 0
    s_cbranch_scc1 M_RW0
    ds_write_b128 v7, v[16:19]
    ds_write_b128 v7, v[20:23] offset:1024""")
    for r in range(8): a("v_mov_b32 v%d, v%d" % (16 + r, 24 + r))
    a("s_branch M_RJ")
    a.label("M_RW0")
    a("""ds_write_b128 v7, v[24:27]
    ds_write_b128 v7, v[28:31] offset:1024""")
    a.label("M_RJ")
    for t in range(2):
        a("ds_read_b64 v[%d:%d], v9 offset:%d" % (40 + 2 * t, 41 + 2 * t, UO + 1024 + 1024 * t))
        a("ds_read_b64 v[%d:%d], v9 offset:%d" % (44 + 2 * t, 45 + 2 * t, XO + 1024 * t))
    a("""s_waitcnt lgkmcnt(0)
    s_barrier
    ds_read_b128 v[32:35], v8
    ds_read_b128 v[36:39], v8 offset:1024
    s_waitcnt lgkmcnt(0)""")
    for r in range(8): a("v_add_f32 v%d, v%d, v%d" % (16 + r, 16 + r, 32 + r))
    for t in range(2):
        for p in range(2):
            y0, y1 = 16 + 4 * t + 2 * p, 17 + 4 * t + 2 * p
            u = 40 + 2 * t + p; x = 44 + 2 * t + p
            a("""v_cvt_pk_bf16_f32 v{y0}, v{y0}, v{y1}
            v_lshlrev_b32 v50, 16, v{u}
            v_and_b32 v51, s60, v{u}
            v_mul_f32 v50, s77, v50
            v_mul_f32 v51, s77, v51
            v_cvt_pk_bf16_f32 v50, v50, v51
            v_and_b32 v{y1}, s60, v{y0}
            v_lshlrev_b32 v{y0}, 16, v{y0}
            v_and_b32 v51, s60, v50
            v_lshlrev_b32 v50, 16, v50
            v_add_f32 v{y0}, v{y0}, v50
            v_add_f32 v{y1}, v{y1}, v51
            v_cvt_pk_bf16_f32 v{y0}, v{y0}, v{y1}
            v_lshlrev_b32 v50, 16, v{x}
            v_and_b32 v51, s60, v{x}
            v_and_b32 v{y1}, s60, v{y0}
            v_lshlrev_b32 v{y0}, 16, v{y0}
            v_add_f32 v{y0}, v{y0}, v50
            v_add_f32 v{y1}, v{y1}, v51
            v_cvt_pk_bf16_f32 v{o}, v{y0}, v{y1}""".format(y0=y0, y1=y1, u=u, x=x, o=52 + 2 * t + p))
        a("ds_write_b64 v9, v[%d:%d] offset:%d" % (52 + 2 * t, 53 + 2 * t, XO + 1024 * t))
    a("""v_and_b32 v5, 255, v0
    v_lshl_add_u32 v5, v5, 4, s75
    v_lshlrev_b32 v6, 4, v0
    s_lshl_b32 s52, s46, 13
    s_add_u32 s52, s52, 0x%x
    s_waitcnt lgkmcnt(0)
    s_barrier
    ds_read_b128 v[8:11], v5 offset:%d
    s_waitcnt lgkmcnt(0)
    buffer_store_dwordx4 v[8:11], v6, s[8:11], s52 offen sc1""" % (HT, XO))
    publish(a, 3)
    poll(a, 4, 1, False)
    a("s_cmp_ge_u32 s44, 4")
    a("s_cbranch_scc1 M_LOADER")
    import mega34
    mega34.consumer(a)
    a("s_endpgm")
    a.label("M_LOADER")
    mega34.loader(a, issueB3)
    a.label("M_EXIT")
    a("s_endpgm")
    return kernel_header(KNAME) + a.text() + kernel_desc(KNAME, 256, 100)
```

```python
from common import *
import mega
BB = 65536
RS3 = 208
STGO = 1024
NCH = 11
HOFF = 65536
B4 = 73728

def consumer(a):
    a("""s_and_b32 s50, s44, 1               ; wm
    s_lshr_b32 s51, s44, 1                ; wn
    v_lshrrev_b32 v5, 2, v3               ; r
    v_and_b32 v6, 3, v3                   ; cc
    v_lshl_add_u32 v7, v4, 2, v5          ; 4g + r
    v_and_b32 v8, 7, v7""")
    a("""s_mul_i32 s52, s51, 48
    s_add_u32 s52, s52, s48
    s_lshl_b32 s52, s52, 2
    s_add_u32 s52, s52, 0x%x
    s_add_u32 s53, s52, 5632
    v_lshlrev_b32 v9, 4, v4""" % CS)
    for ft in range(3):
        for mat in range(2):
            r = 212 + 4 * (2 * ft + mat)
            a("buffer_load_dwordx4 v[%d:%d], v9, s[8:11], s%d offen offset:%d sc1" % (r, r + 3, 52 + mat, 64 * ft))
    for x in range(4):
        a("""s_lshl_b32 s52, s51, 1
        s_add_u32 s52, s52, %d
        s_and_b32 s52, s52, 3
        s_lshl_b32 s53, s50, 2
        s_add_u32 s52, s52, s53
        v_xor_b32 v9, s52, v8
        v_lshlrev_b32 v9, 5, v9
        v_lshl_add_u32 v9, v6, 3, v9
        v_lshl_add_u32 v%d, v7, 8, v9""" % (x, 10 + x))
    a("v_and_b32 v8, 1, v4")
    for ft in range(3):
        a("""s_mul_i32 s52, s51, 3
        s_add_u32 s52, s52, %d
        v_xor_b32 v9, s52, v8
        v_lshlrev_b32 v9, 5, v9
        v_lshl_add_u32 v9, v6, 3, v9
        v_mul_u32_u24 v%d, 192, v7
        v_add_u32 v%d, v%d, v9
        v_add_u32 v%d, 0x%x, v%d""" % (ft, 236 + ft, 236 + ft, 236 + ft, 236 + ft, BB, 236 + ft))
    for r in range(16, 128):
        a("v_mov_b32 v%d, 0" % r)
    for r in range(128, 132):
        a("v_mov_b32 v%d, 0x3f803f80" % r)
    def acc(x, ft, mat): return 16 + 4 * ((x * 3 + ft) * 2 + mat)
    FB = [132, 172]
    def reads(ks, fb):
        l = []
        for x in range(4):
            for rd in range(2):
                l.append("ds_read_b64_tr_b16 v[%d:%d], v%d offset:%d" % (fb + 4 * x + 2 * rd, fb + 4 * x + 2 * rd + 1, 10 + x, (32 * ks + 16 * rd) * 256))
        for ft in range(3):
            for mat in range(2):
                for rd in range(2):
                    r = fb + 16 + 4 * (2 * ft + mat) + 2 * rd
                    l.append("ds_read_b64_tr_b16 v[%d:%d], v%d offset:%d" % (r, r + 1, 236 + ft, 12288 * mat + (32 * ks + 16 * rd) * 192))
        return l
    def mfmas(fb):
        l = []
        for ft in range(3):
            for mat in range(2):
                for x in range(4):
                    c = acc(x, ft, mat); w = fb + 16 + 4 * (2 * ft + mat); h = fb + 4 * x
                    l.append("v_mfma_f32_16x16x32_bf16 v[%d:%d], v[%d:%d], v[%d:%d], v[%d:%d]" % (c, c + 3, w, w + 3, h, h + 3, c, c + 3))
        for x in range(2):
            h = fb + 4 * x
            l.append("v_mfma_f32_16x16x32_bf16 v[%d:%d], v[%d:%d], v[%d:%d], v[%d:%d]" % (112 + 4 * x, 115 + 4 * x, h, h + 3, h, h + 3, 112 + 4 * x, 115 + 4 * x))
            l.append("v_mfma_f32_16x16x32_bf16 v[%d:%d], v[128:131], v[%d:%d], v[%d:%d]" % (120 + 4 * x, 123 + 4 * x, h, h + 3, 120 + 4 * x, 123 + 4 * x))
        return l
    def inter(m, r):
        for i, x in enumerate(m):
            a(x)
            if i < len(r): a(r[i])
    a("s_barrier")
    for l in reads(0, FB[0]): a(l)
    for c in range(8):
        a("s_waitcnt lgkmcnt(0)")
        inter(mfmas(FB[0]), reads(1, FB[1]))
        a("s_waitcnt lgkmcnt(0)")
        if c < 7:
            a("s_barrier")
            for regs, st in (([10, 11, 12, 13], 16384), ([236, 237, 238], 24576)):
                d = st if (c + 1) % 4 else -3 * st
                for r in regs:
                    if d > 0: a("v_add_u32 v%d, %d, v%d" % (r, d, r))
                    else: a("v_subrev_u32 v%d, %d, v%d" % (r, -d, r))
            inter(mfmas(FB[1]), reads(0, FB[0]))
        else:
            inter(mfmas(FB[1]), [])
    a("""s_lshl_b32 s52, s50, 6
    s_lshl_b32 s53, s51, 5
    s_add_u32 s52, s52, s53
    v_add_u32 v9, s52, v3
    v_lshlrev_b32 v9, 3, v9
    v_and_b32 v6, 3, v3
    v_lshrrev_b32 v5, 2, v3
    s_nop 7""")
    for x in range(2):
        g = 112 + 4 * x
        a("""v_cmp_eq_u32 vcc, 1, v6
        s_nop 1
        v_cndmask_b32 v{t}, v{g0}, v{g1}, vcc
        v_cmp_eq_u32 vcc, 2, v6
        s_nop 1
        v_cndmask_b32 v{t}, v{t}, v{g2}, vcc
        v_cmp_eq_u32 vcc, 3, v6
        s_nop 1
        v_cndmask_b32 v{t}, v{t}, v{g3}, vcc
        v_mov_b32 v{s}, v{sm}""".format(t=133 + 2 * x, s=132 + 2 * x, g0=g, g1=g + 1, g2=g + 2, g3=g + 3, sm=120 + 4 * x))
    a("""v_cmp_eq_u32 vcc, v4, v5
    s_and_saveexec_b64 s[54:55], vcc
    ds_write_b64 v9, v[132:133]
    ds_write_b64 v9, v[134:135] offset:128
    s_mov_b64 exec, s[54:55]
    s_lshl_b32 s52, s50, 6
    v_add_u32 v9, s52, v3
    v_mul_u32_u24 v8, %d, v9
    v_lshlrev_b32 v9, 3, v9
    s_waitcnt lgkmcnt(0)
    s_barrier""" % RS3)
    for x in range(4):
        a("""s_lshl_b32 s52, s51, 1
        s_add_u32 s52, s52, %d
        s_and_b32 s52, s52, 3
        s_mul_i32 s%d, s52, %d
        s_lshl_b32 s52, s52, 7
        v_add_u32 v7, s52, v9
        ds_read_b64 v[%d:%d], v7""" % (x, 56 + x, 16 * RS3, 132 + 2 * x, 133 + 2 * x))
    a("""s_mul_i32 s52, s51, 96
    s_add_u32 s52, s52, %d
    v_lshl_add_u32 v8, v4, 3, v8
    v_add_u32 v8, s52, v8
    s_waitcnt vmcnt(0) lgkmcnt(0)""" % STGO)
    for x in range(4):
        sm, sq = 132 + 2 * x, 133 + 2 * x
        a("""v_mul_f32 v{sm}, 0x3b000000, v{sm}
        v_mul_f32 v{sq}, 0x3b000000, v{sq}
        v_fma_f32 v{sq}, -v{sm}, v{sm}, v{sq}
        v_max_f32 v{sq}, 0, v{sq}
        v_cvt_pk_bf16_f32 v{sm}, v{sm}, v{sq}
        v_and_b32 v{sq}, s60, v{sm}
        v_lshlrev_b32 v{sm}, 16, v{sm}
        v_add_f32 v{sq}, 0x3727c5ac, v{sq}
        v_cvt_pk_bf16_f32 v{sq}, v{sq}, v{sq}
        v_lshlrev_b32 v{sq}, 16, v{sq}
        v_sqrt_f32 v{sq}, v{sq}
        s_nop 0
        v_cvt_pk_bf16_f32 v{sq}, v{sq}, v{sq}
        v_lshlrev_b32 v{sq}, 16, v{sq}
        v_rcp_f32 v{sq}, v{sq}
        v_add_u32 v{ad}, s{so}, v8""".format(sm=sm, sq=sq, so=56 + x, ad=160 + x))
    for x in range(4):
        sm, rs = 132 + 2 * x, 133 + 2 * x
        for ft in range(3):
            g = acc(x, ft, 0); u = acc(x, ft, 1); cg = 212 + 8 * ft; cu = cg + 4
            o = 142 + 2 * ((x * 3 + ft) % 8)
            for r in range(4):
                a("v_fma_f32 v%d, -v%d, v%d, v%d" % (g + r, sm, cg + r, g + r))
                a("v_fma_f32 v%d, -v%d, v%d, v%d" % (u + r, sm, cu + r, u + r))
            for r in range(4):
                a("v_mul_f32 v%d, v%d, v%d" % (g + r, g + r, rs))
                a("v_mul_f32 v%d, v%d, v%d" % (u + r, u + r, rs))
            for p in range(2):
                a("""v_cvt_pk_bf16_f32 v{g0}, v{g0}, v{g1}
                v_cvt_pk_bf16_f32 v{u0}, v{u0}, v{u1}
                v_and_b32 v{g1}, s60, v{g0}
                v_lshlrev_b32 v{g0}, 16, v{g0}
                v_and_b32 v{u1}, s60, v{u0}
                v_lshlrev_b32 v{u0}, 16, v{u0}
                v_max_f32 v{g0}, 0, v{g0}
                v_max_f32 v{g1}, 0, v{g1}
                v_mul_f32 v{g0}, v{g0}, v{u0}
                v_mul_f32 v{g1}, v{g1}, v{u1}
                v_cvt_pk_bf16_f32 v{o}, v{g0}, v{g1}""".format(g0=g + 2 * p, g1=g + 2 * p + 1, u0=u + 2 * p, u1=u + 2 * p + 1, o=o + p))
            a("ds_write_b64 v%d, v[%d:%d] offset:%d" % (160 + x, o, o + 1, 32 * ft))
    a("s_mov_b32 s52, 43691")
    a("s_mov_b32 s53, 2752")
    for j in range(6):
        a("""v_add_u32 v5, {o}, v0
        v_mul_lo_u32 v6, v5, s52
        v_lshrrev_b32 v6, 19, v6
        v_mul_u32_u24 v7, 12, v6
        v_sub_u32 v5, v5, v7
        v_lshlrev_b32 v5, 4, v5
        v_mul_u32_u24 v7, {rs}, v6
        v_add_u32 v{la}, v7, v5
        v_mul_lo_u32 v7, v6, s53
        v_add_u32 v{ga}, v7, v5""".format(o=256 * j, rs=RS3, la=16 + j, ga=24 + j))
    a("""s_mul_i32 s52, s47, 2752
    s_lshl_b32 s53, s48, 1
    s_add_u32 s52, s52, s53
    s_add_u32 s52, s52, 0x%x
    s_waitcnt lgkmcnt(0)
    s_barrier""" % HM)
    for j in range(6):
        a("ds_read_b128 v[%d:%d], v%d offset:%d" % (32 + 4 * j, 35 + 4 * j, 16 + j, STGO))
    for j in range(6):
        a("s_waitcnt lgkmcnt(%d)" % (5 - j))
        a("buffer_store_dwordx4 v[%d:%d], v%d, s[8:11], s52 offen sc1" % (32 + 4 * j, 35 + 4 * j, 24 + j))
    mega.publish(a, 7)
    srd(a, 12, P_OUT, 2097152)
    a("""s_and_b32 s50, s44, 1               ; wl
    s_lshr_b32 s51, s44, 1                ; wd
    v_lshrrev_b32 v5, 2, v3
    v_and_b32 v6, 3, v3""")
    for ks in range(4):
        a("""v_xor_b32 v7, %d, v5
        v_lshlrev_b32 v7, 2, v7
        v_xor_b32 v8, v4, v6
        v_or_b32 v7, v7, v8
        v_lshlrev_b32 v7, 4, v7
        s_lshl_b32 s52, s50, 5
        v_add_u32 v8, s52, v3
        v_lshl_add_u32 v%d, v8, 8, v7""" % (ks, 10 + ks))
    a("""v_lshrrev_b32 v7, 1, v5
    v_and_b32 v8, 1, v4
    v_lshl_or_b32 v7, v8, 1, v7
    v_lshl_add_u32 v8, v4, 3, v5""")
    for dt in range(2):
        a("""s_lshl_b32 s52, s51, 1
        s_add_u32 s52, s52, %d
        v_xor_b32 v9, s52, v7
        v_lshlrev_b32 v9, 5, v9
        v_lshl_add_u32 v9, v6, 3, v9
        v_lshl_add_u32 v9, v8, 7, v9
        v_add_u32 v%d, 0x%x, v9""" % (dt, 14 + dt, B4))
    for r in range(16, 32):
        a("v_mov_b32 v%d, 0" % r)
    def acc4(dt, lt): return 16 + 4 * (2 * dt + lt)
    FB4 = [32, 96]
    def reads4(nks, fb):
        l = []
        for ks in range(nks):
            b = fb + 16 * ks
            for lt in range(2):
                l.append("ds_read_b128 v[%d:%d], v%d offset:%d" % (b + 4 * lt, b + 4 * lt + 3, 10 + ks, 4096 * lt))
            for dt in range(2):
                for rd in range(2):
                    r = b + 8 + 4 * dt + 2 * rd
                    l.append("ds_read_b64_tr_b16 v[%d:%d], v%d offset:%d" % (r, r + 1, 14 + dt, (32 * ks + 4 * rd) * 128))
        return l
    def mfmas4(nks, fb):
        l = []
        for ks in range(nks):
            b = fb + 16 * ks
            for dt in range(2):
                for lt in range(2):
                    c = acc4(dt, lt); w = b + 8 + 4 * dt; h = b + 4 * lt
                    l.append("v_mfma_f32_16x16x32_bf16 v[%d:%d], v[%d:%d], v[%d:%d], v[%d:%d]" % (c, c + 3, w, w + 3, h, h + 3, c, c + 3))
        return l
    def nks(c): return 4 if c < NCH - 1 else 3
    a("s_barrier")
    for c in range(NCH):
        a("s_barrier")
        rd = reads4(nks(c), FB4[c & 1])
        mf = mfmas4(nks(c - 1), FB4[(c - 1) & 1]) if c > 0 else []
        i = j = 0
        while i < len(rd) or j < len(mf):
            for _ in range(3):
                if i < len(rd): a(rd[i]); i += 1
            for _ in range(2):
                if j < len(mf): a(mf[j]); j += 1
        if c < NCH - 1:
            for regs, ns in (([10, 11, 12, 13], 4), ([14, 15], 5)):
                d = 16384 if (c + 1) % ns else -(ns - 1) * 16384
                for r in regs:
                    if d > 0: a("v_add_u32 v%d, %d, v%d" % (r, d, r))
                    else: a("v_subrev_u32 v%d, %d, v%d" % (r, -d, r))
        a("s_waitcnt lgkmcnt(0)")
    a("""v_lshrrev_b32 v7, 1, v5
    v_lshl_add_u32 v7, v4, 1, v7
    v_and_b32 v7, 3, v7
    v_lshl_add_u32 v8, v4, 2, v5
    s_lshl_b32 s52, s51, 5
    v_add_u32 v8, s52, v8""")
    for lt in range(2):
        a("""s_lshl_b32 s52, s50, 1
        s_add_u32 s52, s52, %d
        v_xor_b32 v9, s52, v7
        v_lshlrev_b32 v9, 5, v9
        v_lshl_add_u32 v9, v6, 3, v9
        v_lshl_add_u32 v9, v8, 7, v9
        v_add_u32 v%d, 0x%x, v9""" % (lt, 10 + lt, HOFF))
    for m in mfmas4(3, FB4[(NCH - 1) & 1]): a(m)
    for dt in range(2):
        for lt in range(2):
            r = 160 + 2 * (2 * dt + lt)
            a("ds_read_b64_tr_b16 v[%d:%d], v%d offset:%d" % (r, r + 1, 10 + lt, 2048 * dt))
    a("""s_lshl_b32 s52, s50, 5
    s_add_u32 s52, s52, s72
    v_add_u32 v8, s52, v3
    v_lshlrev_b32 v8, 10, v8
    v_lshl_add_u32 v8, v4, 3, v8
    s_lshl_b32 s52, s51, 5
    s_add_u32 s52, s52, s73
    s_lshl_b32 s52, s52, 1
    s_add_u32 s53, s52, 16384
    s_nop 4
    s_waitcnt lgkmcnt(0)""")
    for dt in range(2):
        for lt in range(2):
            c = acc4(dt, lt); h = 160 + 2 * (2 * dt + lt)
            for p in range(2):
                a("""v_cvt_pk_bf16_f32 v{c0}, v{c0}, v{c1}
                v_lshlrev_b32 v170, 16, v{h}
                v_and_b32 v171, s60, v{h}
                v_and_b32 v{c1}, s60, v{c0}
                v_lshlrev_b32 v{c0}, 16, v{c0}
                v_add_f32 v{c0}, v{c0}, v170
                v_add_f32 v{c1}, v{c1}, v171
                v_cvt_pk_bf16_f32 v{h}, v{c0}, v{c1}""".format(c0=c + 2 * p, c1=c + 2 * p + 1, h=h + p))
            a("buffer_store_dwordx2 v[%d:%d], v8, s[12:15], s%d offen offset:%d" % (h, h + 1, 52 + lt, 32 * dt))

def loader(a, issueB3):
    a("v_lshrrev_b32 v5, 4, v1")
    for par in range(2):
        a("""v_add_u32 v6, %d, v5
        v_lshlrev_b32 v6, 1, v6
        v_xor_b32 v6, v6, v3
        v_lshlrev_b32 v6, 4, v6
        v_lshl_add_u32 v%d, v5, 12, v6""" % (4 * par, 10 + par))
    a("""s_lshl_b32 s52, s88, 16
    s_lshl_b32 s53, s47, 1
    s_add_u32 s52, s52, s53
    s_add_u32 s52, s52, 0x%x              ; sA
    s_lshl_b32 s54, s88, 12               ; lds A off""" % HT)
    def issueA3(c):
        sb = (c % 4) * 16384
        for p in range(4):
            a("s_add_u32 m0, s54, %d" % (sb + 1024 * p))
            a("s_add_u32 s56, s52, %d" % (c * 64 * 4096 + p * 16384))
            a("buffer_load_dwordx4 v%d, s[8:11], s56 offen sc1 lds" % (10 + (p & 1)))
    for c in range(4): issueA3(c)
    srd(a, 4, P_WD, 1376 * 1024)
    a("""v_lshrrev_b32 v6, 3, v1
    v_and_b32 v7, 7, v1""")
    for p in range(4):
        a("""v_add_u32 v8, %d, v5
        v_xor_b32 v9, v8, v3
        v_mul_u32_u24 v8, 2752, v8
        v_lshl_add_u32 v%d, v9, 4, v8""" % (4 * p, 20 + p))
    for par in range(2):
        a("""v_and_b32 v8, 1, v5
        v_or_b32 v8, %d, v8
        v_lshlrev_b32 v8, 1, v8
        v_xor_b32 v8, v8, v7
        v_lshlrev_b32 v8, 4, v8
        v_lshl_add_u32 v%d, v6, 10, v8""" % (2 * par, 24 + par))
    a("""v_lshlrev_b32 v8, 1, v5
    v_xor_b32 v8, v8, v7
    v_lshlrev_b32 v8, 4, v8
    v_lshl_add_u32 v26, v6, 12, v8        ; h^T voffset
    s_lshl_b32 s61, s88, 4
    s_add_u32 s61, s61, s72
    s_mul_i32 s61, s61, 2752
    s_add_u32 s61, s61, 0x%x              ; sA4
    s_lshl_b32 s62, s88, 15
    s_lshl_b32 s63, s73, 1
    s_add_u32 s62, s62, s63               ; sB4
    s_lshl_b32 s63, s88, 4
    s_add_u32 s63, s63, s73
    s_lshl_b32 s63, s63, 12
    s_lshl_b32 s64, s72, 1
    s_add_u32 s63, s63, s64
    s_add_u32 s63, s63, 0x%x              ; h src
    s_lshl_b32 s64, s88, 11""" % (HM, HT))
    waits = [12, 8, 14, 20, 20, 20, 10, 0]
    for c in range(8):
        a("s_waitcnt vmcnt(%d)" % waits[c])
        a("s_barrier")
        if c >= 1 and c + 3 < 8:
            issueA3(c + 3); issueB3(c + 3)
    a("s_barrier")
    def issueA4(c):
        sb = (c % 4) * 16384
        a("s_add_u32 s57, s61, %d" % (c * 256))
        for p in range(4):
            a("s_add_u32 m0, s54, %d" % (sb + 1024 * p))
            a("s_nop 0")
            a("buffer_load_dwordx4 v%d, s[8:11], s57 offen sc1 lds" % (20 + p))
    def issueB4(c):
        sb = B4 + (c % 5) * 16384
        for p in range(4):
            a("s_add_u32 m0, s54, %d" % (sb + 1024 * p))
            a("s_add_u32 s57, s62, %d" % (c * 128 * 1024 + p * 8192))
            a("buffer_load_dwordx4 v%d, s[4:7], s57 offen lds" % (24 + (p & 1)))
    for c in range(5): issueB4(c)
    for p in range(2):
        a("s_add_u32 m0, s64, %d" % (HOFF + 1024 * p))
        a("s_add_u32 s57, s63, %d" % (p * 8 * 4096))
        a("buffer_load_dwordx4 v26, s[8:11], s57 offen sc1 lds")
    a("s_barrier")
    a("s_barrier")
    mega.poll(a, 4, 2, True)
    for c in range(4): issueA4(c)
    seq = [("A", c) for c in range(4)]
    for c in range(NCH):
        idx = seq.index(("A", c))
        need = idx
        if ("B", c) in seq: need = max(need, seq.index(("B", c)))
        a("s_waitcnt vmcnt(%d)" % (4 * (len(seq) - 1 - need)))
        a("s_barrier")
        if c >= 1:
            if c + 3 < NCH: issueA4(c + 3); seq.append(("A", c + 3))
            if c + 4 < NCH: issueB4(c + 4); seq.append(("B", c + 4))
```

```python
import sys, os
sys.path.insert(0, os.path.dirname(__file__))
import mega
HDR = open(os.path.join(os.path.dirname(__file__), "..", "cdna_kernels", "sequential_preLN__ssm_conv_s4d__glu_gated_reglu__prompt.s.ref")).read().split("; Override launch")[0]
out = sys.argv[1] if len(sys.argv) > 1 else "sequential_preLN__ssm_conv_s4d__glu_gated_reglu__prompt.s"
open(out, "w").write(HDR + "; @launch grid=(%d,1,1) block=(512,1,1) lds=%d\n.amdgcn_target \"amdgcn-amd-amdhsa--gfx950\"\n.text\n" % (mega.GRID, mega.LDS) + mega.gen())
```

```python
UT, XT, KR0, KR1, HT, CS, HM = 0, 0x200000, 0x400000, 0x620000, 0x840000, 0xA40000, 0xA80000
WS_LIMIT = 0x1100000
KROW = 4112

class Asm:
    def __init__(self):
        self.lines = []
    def __call__(self, s):
        for l in s.strip("\n").split("\n"):
            l = l.strip()
            if l:
                self.lines.append("    " + l)
    def label(self, l):
        self.lines.append(l + ":")
    def comment(self, c):
        self.lines.append("    ; " + c)
    def text(self):
        return "\n".join(self.lines) + "\n"

def vr(b, n=1):
    return "v%d" % b if n == 1 else "v[%d:%d]" % (b, b + n - 1)
def sr(b, n=1):
    return "s%d" % b if n == 1 else "s[%d:%d]" % (b, b + n - 1)

def kernel_header(name):
    return """.globl %s
.p2align 8
.type %s,@function
%s:
""" % (name, name, name)

def kernel_desc(name, vgpr, sgpr=102, accum=None):
    if accum is None:
        accum = (vgpr + 3) // 4 * 4
    return """.section .rodata,"a"
.p2align 6
.amdhsa_kernel %s
  .amdhsa_next_free_vgpr %d
  .amdhsa_next_free_sgpr %d
  .amdhsa_accum_offset %d
  .amdhsa_group_segment_fixed_size 0
  .amdhsa_kernarg_size 112
  .amdhsa_user_sgpr_count 2
  .amdhsa_user_sgpr_kernarg_segment_ptr 1
  .amdhsa_system_sgpr_workgroup_id_x 1
.end_amdhsa_kernel
.text
""" % (name, vgpr, sgpr, accum)

def srd(a, d, ptr, size):
    a("s_mov_b32 s%d, s%d" % (d, ptr))
    a("s_and_b32 s%d, s%d, 0xffff" % (d + 1, ptr + 1))
    a("s_mov_b32 s%d, 0x%x" % (d + 2, size))
    a("s_mov_b32 s%d, 0x00020000" % (d + 3))

P_X, P_LAR, P_AIM, P_CR, P_CI, P_LDT, P_DSK, P_BX = 16, 18, 20, 22, 24, 26, 28, 30
P_WG, P_WU, P_WD, P_OUT = 32, 34, 36, 38
P_DBG, P_WS = 40, 42
def load_ptrs(a):
    a("""s_load_dwordx16 s[16:31], s[0:1], 0
    s_load_dwordx8 s[32:39], s[0:1], 64
    s_load_dwordx4 s[40:43], s[0:1], 96""")

UX = 0x0
MHT = 0x400000
MHM = 0x600000
MCS = 0xC00000
CNT = 0xC10000
MWS_LIMIT = 0xC20000
```

```python
from common import *
GRID = 256
LDS = 163840
STATS = 0
LOG2E = 0x3fb8aa3b
INV2PI = 0x3e22f983
S = 4160
UO = 4 * S
XO = UO + 5120
CHS = XO + 4096
TABB = 2 * CHS
KNAME = "sequential_preLN__ssm_conv_s4d__glu_gated_reglu__prompt_kernel"
cnt = [0]
def uniq(p):
    cnt[0] += 1
    return "%s_%d" % (p, cnt[0])

def row_reduce16(a, vs):
    for pat in ("quad_perm:[1,0,3,2]", "quad_perm:[2,3,0,1]", "row_half_mirror", "row_mirror"):
        if len(vs) < 3: a("s_nop 1")
        for v in vs:
            a("v_add_f32_dpp v%d, v%d, v%d %s row_mask:0xf bank_mask:0xf" % (v, v, v, pat))
def allreduce64(a, vs, tmps):
    row_reduce16(a, vs)
    for ins in ("v_permlane16_swap_b32", "v_permlane32_swap_b32"):
        for v, t in zip(vs, tmps): a("v_mov_b32 v%d, v%d" % (t, v))
        a("s_nop 1")
        for v, t in zip(vs, tmps): a("%s v%d, v%d" % (ins, v, t))
        for v, t in zip(vs, tmps): a("v_add_f32 v%d, v%d, v%d" % (v, v, t))

def publish(a, phase):
    l = uniq("PUB")
    a("""s_waitcnt vmcnt(0) lgkmcnt(0)
    s_barrier
    s_cmp_lg_u32 s44, 0
    s_cbranch_scc1 %s
    s_mov_b64 exec, 1""" % l)
    if phase == 1:
        a("""s_and_b32 s96, s45, 1
        s_lshl_b32 s96, s96, 7
        v_mov_b32 v252, s96
        v_mov_b32 v253, 1
        buffer_atomic_add v253, v252, s[68:71], 0 offen sc1""")
    elif phase == 2:
        l2 = uniq("PUB")
        a("""s_lshl_b32 s96, s49, 7
        s_add_u32 s96, s96, 0x%x
        v_mov_b32 v252, s96
        v_mov_b32 v253, 1
        buffer_atomic_add v253, v252, s[8:11], 0 offen sc0 sc1
        s_waitcnt vmcnt(0)
        v_readfirstlane_b32 s96, v253
        s_mov_b64 exec, 0xffff
        v_lshlrev_b32 v252, 7, v3
        v_add_u32 v252, 0x%x, v252
        v_mov_b32 v253, 1
        s_cmp_lg_u32 s96, 15
        s_cbranch_scc1 %s
        buffer_atomic_add v253, v252, s[8:11], 0 offen sc1""" % (CNT, CNT + 4096, l2))
        a.label(l2)
    else:
        a("""s_lshl_b32 s96, s49, 7
        s_add_u32 s96, s96, 0x%x
        v_mov_b32 v252, s96
        v_mov_b32 v253, 1
        buffer_atomic_add v253, v252, s[8:11], 0 offen sc1""" % (CNT + 2048))
    a("s_mov_b64 exec, -1")
    a.label(l)

def poll(a, wave, phase):
    l = uniq("POLL"); e = uniq("POLLE")
    a("s_cmp_lg_u32 s44, %d" % wave)
    a("s_cbranch_scc1 %s" % e)
    if phase == 1:
        a("""v_and_b32 v252, 1, v1
        v_lshlrev_b32 v252, 7, v252
        s_mov_b32 s96, 128""")
        srdn = "s[68:71]"
    else:
        a("""s_lshl_b32 s96, s49, 7
        s_add_u32 s96, s96, 0x%x
        v_mov_b32 v252, s96
        s_mov_b32 s96, 16""" % (CNT + (4096 if phase == 2 else 2048)))
        srdn = "s[8:11]"
    a("s_mov_b32 s97, 0")
    a.label(l)
    a("""buffer_load_dword v253, v252, %s, 0 offen sc1
    s_waitcnt vmcnt(0)
    v_cmp_ne_u32 vcc, s96, v253
    s_add_u32 s97, s97, 1
    s_nop 3
    s_cmp_eq_u64 vcc, 0
    s_cbranch_scc1 %s
    s_cmp_gt_u32 s97, 0x40000
    s_cbranch_scc1 %s
    s_sleep 4
    s_branch %s""" % (srdn, e, e, l))
    a.label(e)
    a("s_barrier")

def gen():
    a = Asm()
    a("s_cmp_ge_u32 s2, %d" % GRID)
    a("s_cbranch_scc1 M_EXIT")
    load_ptrs(a)
    a("""v_and_b32 v1, 63, v0                ; lane
    v_lshrrev_b32 v2, 6, v0               ; wave
    v_and_b32 v3, 15, v0                  ; n
    v_readfirstlane_b32 s44, v2
    v_bfe_u32 v4, v0, 4, 2                ; g
    s_and_b32 s50, s2, 7                  ; xcd
    s_lshr_b32 s51, s2, 3                 ; local
    s_and_b32 s49, s50, 1
    s_lshl_b32 s49, s49, 3
    s_and_b32 s52, s51, 7
    s_add_u32 s49, s49, s52               ; mt
    s_lshr_b32 s52, s50, 1
    s_lshl_b32 s52, s52, 2
    s_lshr_b32 s53, s51, 3
    s_add_u32 s52, s52, s53               ; ng
    s_lshl_b32 s45, s49, 4
    s_add_u32 s45, s45, s52               ; q
    s_lshl_b32 s46, s50, 5
    s_add_u32 s46, s46, s51               ; cp
    s_lshl_b32 s47, s49, 7                ; l0
    s_mul_i32 s48, s52, 43
    s_add_u32 s48, s48, 4
    s_lshr_b32 s48, s48, 3
    s_min_u32 s48, s48, 80
    s_lshl_b32 s48, s48, 4                ; f0
    s_lshr_b32 s72, s52, 3
    s_lshl_b32 s72, s72, 6
    s_add_u32 s72, s72, s47               ; P4 l0
    s_and_b32 s73, s52, 7
    s_lshl_b32 s73, s73, 6                ; P4 d0
    s_lshr_b32 s74, s44, 2                ; ch
    s_mul_i32 s75, s74, %d                ; KB
    s_lshl_b32 s76, s46, 1
    s_add_u32 s76, s76, s74               ; channel d
    s_waitcnt lgkmcnt(0)""" % CHS)
    srd(a, 8, P_WS, MWS_LIMIT)
    srd(a, 68, P_DBG, 256)
    srd(a, 4, P_X, 2097152)
    a("""v_lshlrev_b32 v5, 4, v1
    s_lshl_b32 s50, s2, 3
    s_add_u32 s50, s50, s44               ; row
    s_lshl_b32 s51, s50, 10
    buffer_load_dwordx4 v[8:11], v5, s[4:7], s51 offen
    v_and_b32 v6, 127, v0                 ; mode
    s_lshl_b32 s52, s76, 8
    v_lshl_add_u32 v7, v6, 1, s52
    s_lshl_b32 s52, s76, 1
    v_mov_b32 v21, s52
    global_load_ushort v12, v7, s[%d:%d]
    global_load_ushort v13, v7, s[%d:%d]
    global_load_ushort v14, v7, s[%d:%d]
    global_load_ushort v15, v7, s[%d:%d]
    global_load_ushort v16, v21, s[%d:%d]""" % (P_LAR, P_LAR + 1, P_AIM, P_AIM + 1, P_CR, P_CR + 1, P_CI, P_CI + 1, P_LDT, P_LDT + 1))
    a("s_mov_b32 s60, 0xffff0000")
    a("s_waitcnt vmcnt(5)")
    for q in range(4):
        a("v_lshlrev_b32 v%d, 16, v%d" % (24 + 2 * q, 8 + q))
        a("v_and_b32 v%d, s60, v%d" % (25 + 2 * q, 8 + q))
    a("""v_add_f32 v32, v24, v25
    v_add_f32 v33, v26, v27
    v_add_f32 v34, v28, v29
    v_add_f32 v35, v30, v31
    v_add_f32 v32, v32, v33
    v_add_f32 v34, v34, v35
    v_add_f32 v32, v32, v34""")
    allreduce64(a, [32], [33])
    a("v_mul_f32 v32, 0x3b000000, v32")
    for q in range(8):
        a("v_sub_f32 v%d, v%d, v32" % (24 + q, 24 + q))
    a("v_mul_f32 v34, v24, v24")
    a("v_mul_f32 v35, v25, v25")
    for q in range(2, 8, 2):
        a("v_fmac_f32 v34, v%d, v%d" % (24 + q, 24 + q))
        a("v_fmac_f32 v35, v%d, v%d" % (25 + q, 25 + q))
    a("v_add_f32 v34, v34, v35")
    allreduce64(a, [34], [33])
    a("""v_mul_f32 v34, 0x3b000000, v34
    v_cvt_pk_bf16_f32 v32, v32, v34
    v_and_b32 v34, s60, v32
    v_lshlrev_b32 v32, 16, v32
    v_add_f32 v34, 0x3727c5ac, v34
    v_cvt_pk_bf16_f32 v34, v34, v34
    v_lshlrev_b32 v34, 16, v34
    v_sqrt_f32 v34, v34
    s_nop 0
    v_cvt_pk_bf16_f32 v34, v34, v34
    v_lshlrev_b32 v34, 16, v34
    v_rcp_f32 v34, v34                    ; rs
    s_mul_i32 s51, s44, 2064
    v_lshl_add_u32 v6, v1, 5, s51
    s_mov_b32 s52, 0x07060302
    s_mov_b32 s53, 0x05040100""")
    for q in range(4):
        a("""v_lshlrev_b32 v24, 16, v{r}
        v_and_b32 v25, s60, v{r}
        v_sub_f32 v24, v24, v32
        v_sub_f32 v25, v25, v32
        v_cvt_pk_bf16_f32 v24, v24, v25
        v_and_b32 v25, s60, v24
        v_lshlrev_b32 v24, 16, v24
        v_mul_f32 v24, v24, v34
        v_mul_f32 v25, v25, v34
        v_cvt_pk_bf16_f32 v24, v24, v25
        v_perm_b32 v{o0}, v{r}, v24, s53
        v_perm_b32 v{o1}, v{r}, v24, s52""".format(r=8 + q, o0=36 + 2 * q, o1=37 + 2 * q))
    a("""ds_write_b128 v6, v[36:39]
    ds_write_b128 v6, v[40:43] offset:16
    v_lshrrev_b32 v6, 1, v0
    v_lshlrev_b32 v6, 2, v6
    v_and_b32 v7, 1, v0
    v_mul_u32_u24 v7, 8256, v7
    v_add_u32 v6, v6, v7
    v_mov_b32 v33, 0
    s_lshl_b32 s51, s2, 7
    s_add_u32 s51, s51, 0x%x
    s_cmp_ge_u32 s2, 48
    s_cbranch_scc1 M_NOZ
    s_cmp_lg_u32 s44, 1
    s_cbranch_scc1 M_NOZ
    s_mov_b64 exec, 1
    buffer_store_dword v33, v33, s[8:11], s51 offen sc1
    s_mov_b64 exec, -1""" % CNT)
    a.label("M_NOZ")
    a("""s_waitcnt lgkmcnt(0)
    s_barrier""")
    for j in range(2):
        for r in range(4):
            a("ds_read_b32 v%d, v6 offset:%d" % (24 + 4 * j + r, 2064 * r + 1024 * j))
    a("""v_lshlrev_b32 v6, 4, v0
    s_lshl_b32 s51, s2, 14
    s_add_u32 s52, s51, 8192
    s_waitcnt lgkmcnt(4)
    buffer_store_dwordx4 v[24:27], v6, s[8:11], s51 offen sc1
    s_waitcnt lgkmcnt(0)
    buffer_store_dwordx4 v[28:31], v6, s[8:11], s52 offen sc1""")
    publish(a, 1)
    a("s_load_dword s77, s[%d:%d], s46" % (P_DSK, P_DSK + 1) if False else "s_lshl_b32 s52, s46, 2\ns_load_dword s77, s[%d:%d], s52" % (P_DSK, P_DSK + 1))
    srd(a, 80, P_WG, 512 * 2752)
    srd(a, 84, P_WU, 512 * 2752)
    a("s_and_b32 s88, s44, 3               ; lw")
    a("""s_lshl_b32 s89, s48, 1                ; sB
    s_mul_i32 s90, s88, 3072""")
    a("s_mov_b32 s52, 43691")
    for p in range(3):
        a("""s_mul_i32 s53, s88, 192
        s_add_u32 s53, s53, %d
        v_add_u32 v6, s53, v1
        v_mul_lo_u32 v7, v6, s52
        v_lshrrev_b32 v7, 19, v7
        v_mul_u32_u24 v8, 12, v7
        v_sub_u32 v6, v6, v8
        v_bfe_u32 v8, v7, 2, 1
        v_lshlrev_b32 v8, 1, v8
        v_xor_b32 v6, v6, v8
        v_mul_u32_u24 v7, 2752, v7
        v_lshl_add_u32 v%d, v6, 4, v7""" % (64 * p, 244 + p))
    def issueB3(c):
        sb = 65536 + (c % 4) * 24576
        a("s_add_u32 s56, s89, %d" % (c * 64 * 2752))
        for mat in range(2):
            for p in range(3):
                a("s_add_u32 m0, s90, %d" % (sb + 12288 * mat + 1024 * p))
                a("s_nop 0")
                a("buffer_load_dwordx4 v%d, s[%d:%d], s56 offen lds" % (244 + p, 80 + 4 * mat, 83 + 4 * mat))
    a("""s_cmp_lt_u32 s44, 4
    s_cselect_b32 s92, s80, s84
    s_cselect_b32 s93, s81, s85
    s_mov_b32 s94, s82
    s_mov_b32 s95, s83
    s_mul_i32 s91, s74, 12288
    s_add_u32 s91, s91, s90""")
    pf = [(c, p) for c in range(4) for p in range(3)]
    def pf1():
        c, p = pf.pop(0)
        a("s_add_u32 m0, s91, %d" % (65536 + c * 24576 + 1024 * p))
        a("s_add_u32 s56, s89, %d" % (c * 64 * 2752))
        a("buffer_load_dwordx4 v%d, s[92:95], s56 offen lds" % (244 + p))
    PT, HTAB = UO + 1024, XO
    a("""v_and_b32 v5, 255, v0               ; t256
    v_and_b32 v10, 7, v3
    v_lshrrev_b32 v18, 3, v3
    v_lshl_add_u32 v10, v18, 7, v10       ; H0
    v_lshrrev_b32 v18, 2, v3
    v_lshlrev_b32 v18, 7, v18
    v_and_b32 v19, 3, v3
    v_lshl_add_u32 v18, v19, 1, v18
    v_add_u32 v18, 256, v18
    v_subrev_u32 v19, 8, v3
    v_lshrrev_b32 v19, 1, v19
    v_lshlrev_b32 v19, 7, v19
    v_and_b32 v20, 1, v3
    v_lshl_add_u32 v19, v20, 2, v19
    v_add_u32 v19, 512, v19
    v_cmp_gt_u32 vcc, 8, v3
    v_lshlrev_b32 v17, 7, v3
    v_add_u32 v17, 1024, v17              ; H2
    v_cndmask_b32 v11, v19, v18, vcc      ; H1
    v_lshl_add_u32 v18, v3, 2, s75
    v_lshlrev_b32 v19, 1, v10
    v_lshlrev_b32 v20, 1, v11
    v_lshlrev_b32 v21, 1, v17
    ds_write_b32 v18, v19 offset:%d
    ds_write_b32 v18, v20 offset:%d
    ds_write_b32 v18, v21 offset:%d
    v_lshlrev_b32 v9, 3, v3
    v_cvt_f32_u32 v10, v10
    v_cvt_f32_u32 v11, v11
    v_cvt_f32_u32 v8, v17
    v_cvt_f32_u32 v9, v9
    s_mov_b32 s52, 0x%x
    s_mov_b32 s53, 0x%x
    v_lshlrev_b32 v12, 16, v12
    v_lshlrev_b32 v13, 16, v13
    v_lshlrev_b32 v14, 16, v14
    v_lshlrev_b32 v15, 16, v15
    v_lshlrev_b32 v16, 16, v16
    v_mul_f32 v12, s52, v12
    v_mul_f32 v16, s52, v16
    v_exp_f32 v12, v12
    v_exp_f32 v16, v16
    s_nop 0
    v_cvt_pk_bf16_f32 v12, v12, v16
    v_and_b32 v16, 0xffff0000, v12
    v_lshlrev_b32 v12, 16, v12
    v_mul_f32 v12, v12, v16
    v_mul_f32 v13, v13, v16
    v_mul_f32 v14, v14, v16
    v_mul_f32 v15, v15, v16
    v_mul_f32 v20, s52, v12
    v_sub_f32 v20, 0, v20
    v_mul_f32 v21, s53, v13
    v_add_f32 v22, v14, v14
    v_add_f32 v23, v15, v15
    v_and_b32 v6, 127, v0
    v_lshl_add_u32 v6, v6, 4, s75
    ds_write_b128 v6, v[20:23] offset:%d
    s_and_b32 s52, s44, 3
    s_lshl_b32 s52, s52, 9
    s_add_u32 s52, s52, s75
    v_lshl_add_u32 v6, v4, 7, s52
    s_waitcnt lgkmcnt(0)
    s_barrier""" % (HTAB, HTAB + 64, HTAB + 128, LOG2E, INV2PI, PT))
    for q in range(8):
        a("ds_read_b128 v[%d:%d], v6 offset:%d" % (24 + 4 * q, 27 + 4 * q, PT + 16 * q))
    for r in range(12):
        a("v_mov_b32 v%d, 0" % (56 + r))
    for q in range(8):
        P = 24 + 4 * q
        a("s_waitcnt lgkmcnt(%d)" % (7 - q))
        pf1()
        o = 8 * (q & 1) + 80
        srcs = [10, 11, 8, 9]
        for t in range(4):
            a("v_mul_f32 v%d, v%d, v%d" % (68 + t, P, srcs[t]))
            a("v_mul_f32 v%d, v%d, v%d" % (72 + t, P + 1, srcs[t]))
        for t in range(4):
            a("v_exp_f32 v%d, v%d" % (68 + t, 68 + t))
            a("v_fract_f32 v%d, v%d" % (72 + t, 72 + t))
        for t in range(4):
            a("v_cos_f32 v%d, v%d" % (76 + t, 72 + t))
            a("v_sin_f32 v%d, v%d" % (72 + t, 72 + t))
        for t in range(3):
            a("v_mul_f32 v%d, v%d, v%d" % (96 + t, 68 + t, P + 2))
            a("v_mul_f32 v%d, v%d, v%d" % (68 + t, 68 + t, P + 3))
        a("v_mul_f32 v%d, v71, v79" % (o + 6))
        a("v_mul_f32 v%d, v71, v75" % (o + 7))
        for t in range(3):
            a("v_mul_f32 v%d, v%d, v%d" % (100 + t, 68 + t, 72 + t))
            a("v_mul_f32 v%d, v%d, v%d" % (104 + t, 68 + t, 76 + t))
        for t in range(3):
            a("v_fma_f32 v%d, v%d, v%d, -v%d" % (o + 2 * t, 96 + t, 76 + t, 100 + t))
            a("v_fma_f32 v%d, -v%d, v%d, -v%d" % (o + 2 * t + 1, 96 + t, 72 + t, 104 + t))
        if q & 1:
            j = q >> 1
            for k in range(8):
                a("v_cvt_pk_bf16_f32 v%d, v%d, v%d" % (112 + 8 * k + j, 80 + k, 88 + k))
            for k in range(8):
                a("v_lshlrev_b32 v%d, 16, v%d" % (96 + (k & 1), 112 + 8 * k + j))
                a("v_and_b32 v%d, s60, v%d" % (98 + (k & 1), 112 + 8 * k + j))
                a("v_sub_f32 v%d, v%d, v%d" % (80 + k, 80 + k, 96 + (k & 1)))
                a("v_sub_f32 v%d, v%d, v%d" % (88 + k, 88 + k, 98 + (k & 1)))
            for k in range(8):
                a("v_cvt_pk_bf16_f32 v%d, v%d, v%d" % (116 + 8 * k + j, 80 + k, 88 + k))
    a("s_nop 1")
    for part in range(2):
        B = 112 + 8 * (6 + part)
        for (ah, bl) in ((0, 0), (0, 4), (4, 0)):
            for t in range(3):
                A = 112 + 8 * (2 * t + part) + ah
                a("v_mfma_f32_16x16x32_bf16 v[%d:%d], v[%d:%d], v[%d:%d], v[%d:%d]" % (56 + 4 * t, 59 + 4 * t, A, A + 3, B + bl, B + bl + 3, 56 + 4 * t, 59 + 4 * t))
    a("""s_and_b32 s52, s44, 3
    s_mul_i32 s52, s52, 3072
    s_add_u32 s52, s52, s75
    v_lshl_add_u32 v6, v1, 4, s52         ; partial write addr
    v_lshl_add_u32 v7, v5, 4, s75         ; KB + t*16
    v_lshrrev_b32 v8, 6, v5
    v_lshlrev_b32 v8, 6, v8
    v_lshl_add_u32 v8, v4, 4, v8
    v_add_u32 v8, s75, v8                 ; htab addr
    s_mul_i32 s53, s74, 6144
    s_add_u32 s53, s53, %d                ; TAB
    v_lshl_add_u32 v9, v3, 4, s53         ; TAB + 16n
    s_nop 7
    s_nop 3""" % TABB)
    for t in range(3):
        a("ds_write_b128 v6, v[%d:%d] offset:%d" % (56 + 4 * t, 59 + 4 * t, 1024 * t))
    a("""v_lshlrev_b32 v6, 3, v5
    v_sub_u32 v6, 2047, v6""")
    for e in range(12):
        a("v_subrev_u32 v%d, %d, v6" % (24 + e, min(e, 10)))
        a("v_cvt_f32_i32 v%d, v%d" % (24 + e, 24 + e))
    for e in range(0, 12, 2):
        a("v_cvt_pk_bf16_f32 v%d, v%d, v%d" % (40 + e // 2, 24 + e, 25 + e))
    for e in range(11):
        if e % 2 == 0: a("v_lshlrev_b32 v%d, 16, v%d" % (24 + e, 40 + e // 2))
        else: a("v_and_b32 v%d, 0xffff0000, v%d" % (24 + e, 40 + e // 2))
    for e in range(11):
        a("v_cvt_u32_f32 v%d, v%d" % (24 + e, 24 + e))
        a("v_lshl_add_u32 v%d, v%d, 1, s53" % (24 + e, 24 + e))
    a("""s_waitcnt lgkmcnt(0)
    s_barrier
    v_cmp_gt_u32 vcc, 192, v5
    s_and_saveexec_b64 s[54:55], vcc
    s_cbranch_execz M_KG_C2""")
    for w in range(4):
        a("ds_read_b128 v[%d:%d], v7 offset:%d" % (56 + 4 * w, 59 + 4 * w, 3072 * w))
    a("ds_read_b128 v[72:75], v8 offset:%d" % HTAB)
    a("s_waitcnt lgkmcnt(0)")
    for r in range(4):
        a("v_add_f32 v%d, v%d, v%d" % (56 + r, 56 + r, 60 + r))
        a("v_add_f32 v%d, v%d, v%d" % (64 + r, 64 + r, 68 + r))
    for r in range(4):
        a("v_add_f32 v%d, v%d, v%d" % (56 + r, 56 + r, 64 + r))
        a("v_add_u32 v%d, v%d, v9" % (72 + r, 72 + r))
    a("""v_cvt_pk_bf16_f32 v56, v56, v57
    v_cvt_pk_bf16_f32 v58, v58, v59
    ds_write_b16 v72, v56
    ds_write_b16_d16_hi v73, v56
    ds_write_b16 v74, v58
    ds_write_b16_d16_hi v75, v58""")
    a.label("M_KG_C2")
    a("""s_mov_b64 exec, s[54:55]
    s_waitcnt lgkmcnt(0)
    s_barrier""")
    for e in range(11):
        a("ds_read_u16 v%d, v%d" % (44 + e, 24 + e))
    a("""v_mov_b32 v64, 0
    v_mov_b32 v65, 0
    v_mov_b32 v66, 0
    v_mov_b32 v67, 0
    v_cmp_eq_u32 vcc, 255, v5
    v_lshl_add_u32 v8, v1, 4, s75         ; KB + lane*16 (u pad zero)
    v_lshrrev_b32 v9, 2, v1
    v_mul_u32_u24 v9, %d, v9
    v_and_b32 v10, 3, v1
    v_lshl_add_u32 v9, v10, 4, v9
    v_add_u32 v9, s75, v9
    s_waitcnt lgkmcnt(0)
    v_cndmask_b32 v52, v52, v64, vcc
    v_cndmask_b32 v53, v53, v64, vcc
    v_cndmask_b32 v54, v54, v64, vcc""" % S)
    for c in range(4):
        for j in range(4):
            a("v_lshl_or_b32 v%d, v%d, 16, v%d" % (68 + 4 * c + j, 45 + c + 2 * j, 44 + c + 2 * j))
        a("ds_write_b128 v7, v[%d:%d] offset:%d" % (68 + 4 * c, 71 + 4 * c, c * S))
    a("""ds_write_b128 v8, v[64:67] offset:%d
    v_cmp_gt_u32 vcc, 16, v1
    s_and_saveexec_b64 s[54:55], vcc
    ds_write_b128 v9, v[64:67] offset:4096
    s_mov_b64 exec, s[54:55]""" % UO)
    poll(a, 0, 1)
    a("""v_lshrrev_b32 v5, 2, v0
    v_and_b32 v6, 3, v0
    v_lshlrev_b32 v7, 14, v5
    v_lshl_add_u32 v7, v6, 4, v7          ; piece*16384 + quarter*16
    s_lshl_b32 s52, s46, 6
    s_add_u32 s53, s52, 0x200000
    buffer_load_dwordx4 v[8:11], v7, s[8:11], s52 offen sc1
    buffer_load_dwordx4 v[12:15], v7, s[8:11], s53 offen sc1
    v_lshlrev_b32 v5, 4, v5               ; piece*8 rows*2B
    v_and_b32 v7, 1, v6
    v_lshl_add_u32 v5, v7, 3, v5          ; + half*8
    v_lshrrev_b32 v6, 1, v6
    v_mul_u32_u24 v6, %d, v6
    v_add_u32 v5, v5, v6                  ; + ch*CHS
    s_mov_b32 s52, 0x07060302
    s_mov_b32 s53, 0x05040100""" % CHS)
    for j in range(2):
        b = 8 + 4 * j
        a("""s_waitcnt vmcnt({w})
        v_perm_b32 v16, v{b1}, v{b0}, s53
        v_perm_b32 v17, v{b3}, v{b2}, s53
        v_perm_b32 v18, v{b1}, v{b0}, s52
        v_perm_b32 v19, v{b3}, v{b2}, s52
        ds_write_b64 v5, v[16:17] offset:{ou}
        ds_write_b64 v5, v[18:19] offset:{ox}""".format(w=1 - j, b0=b, b1=b + 1, b2=b + 2, b3=b + 3, ou=UO + 1024 + 2048 * j, ox=XO + 2048 * j))
    a("""s_bfe_u32 s50, s44, 0x10001           ; mt
    s_and_b32 s51, s44, 1                 ; hf
    v_and_b32 v14, 3, v3
    v_sub_u32 v14, 3, v14
    v_mul_u32_u24 v14, %d, v14
    v_lshrrev_b32 v15, 2, v3
    v_lshlrev_b32 v15, 3, v15
    v_sub_u32 v14, v14, v15
    v_lshl_add_u32 v14, v4, 4, v14
    s_lshl_b32 s52, s51, 9
    s_sub_u32 s53, s75, s52
    s_lshl_b32 s54, s50, 5
    s_sub_u32 s54, s53, s54
    s_add_u32 s54, s54, %d
    v_add_u32 v14, s54, v14               ; vA
    v_lshlrev_b32 v15, 6, v3
    v_lshl_add_u32 v15, v4, 4, v15
    s_add_u32 s53, s53, %d
    v_add_u32 v15, s53, v15               ; vB""" % (S, 4088 - 448 - 3072, UO + 1024 - 448))
    for r in range(16):
        a("v_mov_b32 v%d, 0" % (16 + r))
    a("""s_waitcnt lgkmcnt(0)
    s_barrier""")
    FB = [32, 64]
    def cloads(t, fb):
        l = []
        for q in range(4):
            l.append("ds_read_b128 v[%d:%d], v15 offset:%d" % (fb + 4 * q, fb + 4 * q + 3, 64 * (7 - t) + 1024 * q))
        for j in range(4):
            r = fb + 16 + 4 * j
            off = 64 * (7 - t) + 1024 * (3 - j)
            l.append("ds_read_b64 v[%d:%d], v14 offset:%d" % (r, r + 1, off))
            l.append("ds_read_b64 v[%d:%d], v14 offset:%d" % (r + 2, r + 3, off + 8))
        return l
    for l in cloads(0, FB[0]): a(l)
    for t in range(8):
        fb = FB[t & 1]
        a("s_waitcnt lgkmcnt(0)")
        mf = []
        for j in range(4):
            for nt in range(j, 4):
                r = fb + 16 + 4 * j; b = fb + 4 * (nt - j); c = 16 + 4 * nt
                mf.append("v_mfma_f32_16x16x32_bf16 v[%d:%d], v[%d:%d], v[%d:%d], v[%d:%d]" % (c, c + 3, r, r + 3, b, b + 3, c, c + 3))
        ld = cloads(t + 1, FB[(t + 1) & 1]) if t < 7 else []
        for k in range(12):
            if k < len(ld): a(ld[k])
            if k < 10: a(mf[k])
        if t in (0, 2, 4, 6): pf1()
    a("""s_and_b32 s52, s44, 3
    s_lshl_b32 s53, s52, 11
    s_add_u32 s53, s53, s75
    s_xor_b32 s52, s52, 1
    s_lshl_b32 s52, s52, 11
    s_add_u32 s52, s52, s75
    v_lshl_add_u32 v7, v1, 4, s53         ; write
    v_lshl_add_u32 v8, v1, 4, s52         ; read
    v_lshlrev_b32 v9, 6, v3
    v_lshl_add_u32 v9, v4, 3, v9
    s_lshl_b32 s52, s51, 11
    s_lshl_b32 s53, s50, 5
    s_add_u32 s52, s52, s53
    s_add_u32 s52, s52, s75
    v_add_u32 v9, s52, v9
    s_lshl_b32 s52, s74, 4
    s_lshr_b32 s77, s77, s52
    s_lshl_b32 s77, s77, 16               ; D_skip
    s_barrier
    s_cmp_eq_u32 s51, 0
    s_cbranch_scc1 M_RW0
    ds_write_b128 v7, v[16:19]
    ds_write_b128 v7, v[20:23] offset:1024""")
    for r in range(8): a("v_mov_b32 v%d, v%d" % (16 + r, 24 + r))
    a("s_branch M_RJ")
    a.label("M_RW0")
    a("""ds_write_b128 v7, v[24:27]
    ds_write_b128 v7, v[28:31] offset:1024""")
    a.label("M_RJ")
    for t in range(2):
        a("ds_read_b64 v[%d:%d], v9 offset:%d" % (40 + 2 * t, 41 + 2 * t, UO + 1024 + 1024 * t))
        a("ds_read_b64 v[%d:%d], v9 offset:%d" % (44 + 2 * t, 45 + 2 * t, XO + 1024 * t))
    a("""s_waitcnt lgkmcnt(0)
    s_barrier
    ds_read_b128 v[32:35], v8
    ds_read_b128 v[36:39], v8 offset:1024
    s_waitcnt lgkmcnt(0)""")
    for r in range(8): a("v_add_f32 v%d, v%d, v%d" % (16 + r, 16 + r, 32 + r))
    for t in range(2):
        for p in range(2):
            y0, y1 = 16 + 4 * t + 2 * p, 17 + 4 * t + 2 * p
            u = 40 + 2 * t + p; x = 44 + 2 * t + p
            a("""v_cvt_pk_bf16_f32 v{y0}, v{y0}, v{y1}
            v_lshlrev_b32 v50, 16, v{u}
            v_and_b32 v51, s60, v{u}
            v_mul_f32 v50, s77, v50
            v_mul_f32 v51, s77, v51
            v_cvt_pk_bf16_f32 v50, v50, v51
            v_and_b32 v{y1}, s60, v{y0}
            v_lshlrev_b32 v{y0}, 16, v{y0}
            v_and_b32 v51, s60, v50
            v_lshlrev_b32 v50, 16, v50
            v_add_f32 v{y0}, v{y0}, v50
            v_add_f32 v{y1}, v{y1}, v51
            v_cvt_pk_bf16_f32 v{y0}, v{y0}, v{y1}
            v_lshlrev_b32 v50, 16, v{x}
            v_and_b32 v51, s60, v{x}
            v_and_b32 v{y1}, s60, v{y0}
            v_lshlrev_b32 v{y0}, 16, v{y0}
            v_add_f32 v{y0}, v{y0}, v50
            v_add_f32 v{y1}, v{y1}, v51
            v_cvt_pk_bf16_f32 v{o}, v{y0}, v{y1}""".format(y0=y0, y1=y1, u=u, x=x, o=52 + 2 * t + p))
        a("ds_write_b64 v9, v[%d:%d] offset:%d" % (52 + 2 * t, 53 + 2 * t, XO + 1024 * t))
    a("""v_and_b32 v5, 255, v0
    v_lshl_add_u32 v5, v5, 4, s75
    v_lshlrev_b32 v6, 4, v0
    s_lshl_b32 s52, s46, 13
    s_add_u32 s52, s52, 0x%x
    s_waitcnt lgkmcnt(0)
    s_barrier
    ds_read_b128 v[8:11], v5 offset:%d
    s_waitcnt lgkmcnt(0)
    buffer_store_dwordx4 v[8:11], v6, s[8:11], s52 offen sc1""" % (MHT, XO))
    publish(a, 2)
    poll(a, 0, 2)
    a("s_cmp_ge_u32 s44, 4")
    a("s_cbranch_scc1 M_LOADER")
    import mega34
    mega34.consumer(a)
    a("s_endpgm")
    a.label("M_LOADER")
    mega34.loader(a, issueB3)
    a.label("M_EXIT")
    a("s_endpgm")
    return kernel_header(KNAME) + a.text() + kernel_desc(KNAME, 256, 100)
```

```python
from common import *
import mega
BB = 65536
RS3 = 208
STGO = 1024
NCH = 16
HOFF = 65536
B4 = 73728
NA4, NB4 = 5, 7
CSL = 25600
FT0 = [min((43 * j + 4) >> 3, 80) for j in range(16)]

def consumer(a):
    a("""s_and_b32 s50, s44, 1               ; wm
    s_lshr_b32 s51, s44, 1                ; wn
    v_lshrrev_b32 v5, 2, v3               ; r
    v_and_b32 v6, 3, v3                   ; cc
    v_lshl_add_u32 v7, v4, 2, v5          ; 4g + r
    v_and_b32 v8, 7, v7""")
    for x in range(4):
        a("""s_lshl_b32 s52, s51, 1
        s_add_u32 s52, s52, %d
        s_and_b32 s52, s52, 3
        s_lshl_b32 s53, s50, 2
        s_add_u32 s52, s52, s53
        v_xor_b32 v9, s52, v8
        v_lshlrev_b32 v9, 5, v9
        v_lshl_add_u32 v9, v6, 3, v9
        v_lshl_add_u32 v%d, v7, 8, v9""" % (x, 10 + x))
    a("v_and_b32 v8, 1, v4")
    for ft in range(3):
        a("""s_mul_i32 s52, s51, 3
        s_add_u32 s52, s52, %d
        v_xor_b32 v9, s52, v8
        v_lshlrev_b32 v9, 5, v9
        v_lshl_add_u32 v9, v6, 3, v9
        v_mul_u32_u24 v%d, 192, v7
        v_add_u32 v%d, v%d, v9
        v_add_u32 v%d, 0x%x, v%d""" % (ft, 236 + ft, 236 + ft, 236 + ft, 236 + ft, BB, 236 + ft))
    for r in range(16, 128):
        a("v_mov_b32 v%d, 0" % r)
    for r in range(128, 132):
        a("v_mov_b32 v%d, 0x3f803f80" % r)
    for r in range(240, 252):
        a("v_mov_b32 v%d, 0" % r)
    def acc(x, ft, mat): return 16 + 4 * ((x * 3 + ft) * 2 + mat)
    FB = [132, 172]
    def reads(ks, fb):
        l = []
        for x in range(4):
            for rd in range(2):
                l.append("ds_read_b64_tr_b16 v[%d:%d], v%d offset:%d" % (fb + 4 * x + 2 * rd, fb + 4 * x + 2 * rd + 1, 10 + x, (32 * ks + 16 * rd) * 256))
        for ft in range(3):
            for mat in range(2):
                for rd in range(2):
                    r = fb + 16 + 4 * (2 * ft + mat) + 2 * rd
                    l.append("ds_read_b64_tr_b16 v[%d:%d], v%d offset:%d" % (r, r + 1, 236 + ft, 12288 * mat + (32 * ks + 16 * rd) * 192))
        return l
    def mfmas(fb):
        l = []
        for ft in range(3):
            for mat in range(2):
                for x in range(4):
                    c = acc(x, ft, mat); w = fb + 16 + 4 * (2 * ft + mat); h = fb + 4 * x
                    l.append("v_mfma_f32_16x16x32_bf16 v[%d:%d], v[%d:%d], v[%d:%d], v[%d:%d]" % (c, c + 3, w, w + 3, h, h + 3, c, c + 3))
        for x in range(2):
            h = fb + 4 * x
            l.append("v_mfma_f32_16x16x32_bf16 v[%d:%d], v[%d:%d], v[%d:%d], v[%d:%d]" % (112 + 4 * x, 115 + 4 * x, h, h + 3, h, h + 3, 112 + 4 * x, 115 + 4 * x))
            l.append("v_mfma_f32_16x16x32_bf16 v[%d:%d], v[128:131], v[%d:%d], v[%d:%d]" % (120 + 4 * x, 123 + 4 * x, h, h + 3, 120 + 4 * x, 123 + 4 * x))
        return l
    def inter(m, r, fb):
        for i, x in enumerate(m):
            a(x)
            if i < len(r): a(r[i])
        l1 = mega.uniq("CS"); l2 = mega.uniq("CS")
        a("s_cmp_eq_u32 s50, 0")
        a("s_cbranch_scc0 %s" % l1)
        for mat in range(2):
            for ft in range(3):
                w = fb + 16 + 4 * (2 * ft + mat); c = 240 + 4 * ft
                a("v_mfma_f32_16x16x32_bf16 v[%d:%d], v[%d:%d], v[128:131], v[%d:%d]" % (c, c + 3, w, w + 3, c, c + 3))
            if mat == 0:
                a("s_branch %s" % l2)
                a.label(l1)
        a.label(l2)
    a("s_barrier")
    for l in reads(0, FB[0]): a(l)
    for c in range(8):
        a("s_waitcnt lgkmcnt(0)")
        inter(mfmas(FB[0]), reads(1, FB[1]), FB[0])
        a("s_waitcnt lgkmcnt(0)")
        if c < 7:
            a("s_barrier")
            for regs, st in (([10, 11, 12, 13], 16384), ([236, 237, 238], 24576)):
                d = st if (c + 1) % 4 else -3 * st
                for r in regs:
                    if d > 0: a("v_add_u32 v%d, %d, v%d" % (r, d, r))
                    else: a("v_subrev_u32 v%d, %d, v%d" % (r, -d, r))
            inter(mfmas(FB[1]), reads(0, FB[0]), FB[1])
        else:
            inter(mfmas(FB[1]), [], FB[1])
    a("""s_lshl_b32 s52, s50, 6
    s_lshl_b32 s53, s51, 5
    s_add_u32 s52, s52, s53
    v_add_u32 v9, s52, v3
    v_lshlrev_b32 v9, 3, v9
    v_and_b32 v6, 3, v3
    v_lshrrev_b32 v5, 2, v3
    s_nop 7""")
    for x in range(2):
        g = 112 + 4 * x
        a("""v_cmp_eq_u32 vcc, 1, v6
        s_nop 1
        v_cndmask_b32 v{t}, v{g0}, v{g1}, vcc
        v_cmp_eq_u32 vcc, 2, v6
        s_nop 1
        v_cndmask_b32 v{t}, v{t}, v{g2}, vcc
        v_cmp_eq_u32 vcc, 3, v6
        s_nop 1
        v_cndmask_b32 v{t}, v{t}, v{g3}, vcc
        v_mov_b32 v{s}, v{sm}""".format(t=133 + 2 * x, s=132 + 2 * x, g0=g, g1=g + 1, g2=g + 2, g3=g + 3, sm=120 + 4 * x))
    a("""v_cmp_eq_u32 vcc, v4, v5
    s_and_saveexec_b64 s[54:55], vcc
    ds_write_b64 v9, v[132:133]
    ds_write_b64 v9, v[134:135] offset:128
    s_mov_b64 exec, s[54:55]
    s_mul_i32 s52, s50, 384
    s_mul_i32 s53, s51, 192
    s_add_u32 s52, s52, s53
    v_lshl_add_u32 v9, v4, 4, s52
    v_cmp_eq_u32 vcc, 0, v3
    s_and_saveexec_b64 s[54:55], vcc
    ds_write_b128 v9, v[240:243] offset:25600
    ds_write_b128 v9, v[244:247] offset:25664
    ds_write_b128 v9, v[248:251] offset:25728
    s_mov_b64 exec, s[54:55]
    s_lshl_b32 s52, s50, 6
    v_add_u32 v9, s52, v3
    v_mul_u32_u24 v8, 192, v9
    v_lshlrev_b32 v9, 3, v9
    s_waitcnt lgkmcnt(0)
    s_barrier""")
    for x in range(4):
        a("""s_lshl_b32 s52, s51, 1
        s_add_u32 s52, s52, %d
        s_and_b32 s52, s52, 3
        s_mul_i32 s%d, s52, %d
        s_lshl_b32 s52, s52, 7
        v_add_u32 v7, s52, v9
        ds_read_b64 v[%d:%d], v7""" % (x, 56 + x, 16 * 192, 132 + 2 * x, 133 + 2 * x))
    a("""s_mul_i32 s52, s51, 192
    v_lshl_add_u32 v7, v4, 4, s52""")
    for ft in range(3):
        for mat in range(2):
            r = 212 + 4 * (2 * ft + mat)
            a("ds_read_b128 v[%d:%d], v7 offset:%d" % (r, r + 3, CSL + 384 * mat + 64 * ft))
    a("""v_lshrrev_b32 v5, 1, v4
    v_lshrrev_b32 v6, 3, v3
    v_lshl_add_u32 v5, v6, 1, v5
    s_mul_i32 s52, s51, 6
    v_add_u32 v5, s52, v5
    v_and_b32 v6, 1, v4
    v_lshl_add_u32 v8, v6, 3, v8
    v_add_u32 v8, %d, v8""" % STGO)
    for ft in range(3):
        a("""v_add_u32 v6, %d, v5
        v_subrev_u32 v7, 12, v6
        v_cmp_le_u32 vcc, 12, v6
        s_nop 1
        v_cndmask_b32 v6, v6, v7, vcc
        v_lshl_add_u32 v%d, v6, 4, v8""" % (2 * ft, 164 + ft))
    a("""s_and_b32 s52, s45, 15
    s_add_u32 s52, s52, 1
    s_mul_i32 s52, s52, 43
    s_add_u32 s52, s52, 4
    s_lshr_b32 s52, s52, 3
    s_min_u32 s52, s52, 80
    s_lshl_b32 s52, s52, 4
    s_and_b32 s53, s45, 15
    s_cmp_eq_u32 s53, 15
    s_cselect_b32 s52, 1376, s52
    s_sub_u32 s52, s52, s48
    s_cmp_eq_u32 s52, 80
    s_cselect_b32 s52, 0, -1
    s_cmp_eq_u32 s51, 1
    s_cselect_b32 s61, s52, -1
    s_waitcnt vmcnt(0) lgkmcnt(0)""")
    for x in range(4):
        sm, sq = 132 + 2 * x, 133 + 2 * x
        a("""v_mul_f32 v{sm}, 0x3b000000, v{sm}
        v_mul_f32 v{sq}, 0x3b000000, v{sq}
        v_fma_f32 v{sq}, -v{sm}, v{sm}, v{sq}
        v_max_f32 v{sq}, 0, v{sq}
        v_cvt_pk_bf16_f32 v{sm}, v{sm}, v{sq}
        v_and_b32 v{sq}, s60, v{sm}
        v_lshlrev_b32 v{sm}, 16, v{sm}
        v_add_f32 v{sq}, 0x3727c5ac, v{sq}
        v_cvt_pk_bf16_f32 v{sq}, v{sq}, v{sq}
        v_lshlrev_b32 v{sq}, 16, v{sq}
        v_sqrt_f32 v{sq}, v{sq}
        s_nop 0
        v_cvt_pk_bf16_f32 v{sq}, v{sq}, v{sq}
        v_lshlrev_b32 v{sq}, 16, v{sq}
        v_rcp_f32 v{sq}, v{sq}""".format(sm=sm, sq=sq))
    for x in range(4):
        sm, rs = 132 + 2 * x, 133 + 2 * x
        a("v_sub_f32 v%d, 0, v%d" % (sm, sm))
        for ft in range(3):
            g = acc(x, ft, 0); u = acc(x, ft, 1); cg = 212 + 8 * ft; cu = cg + 4
            o = 142 + 2 * ((x * 3 + ft) % 8)
            for (v_, c_) in ((g, cg), (g + 2, cg + 2), (u, cu), (u + 2, cu + 2)):
                a("v_pk_fma_f32 v[%d:%d], v[%d:%d], v[%d:%d], v[%d:%d] op_sel_hi:[0,1,1]" % (v_, v_ + 1, sm, sm + 1, c_, c_ + 1, v_, v_ + 1))
            for v_ in (g, g + 2, u, u + 2):
                a("v_pk_mul_f32 v[%d:%d], v[%d:%d], v[%d:%d] op_sel:[1,0] op_sel_hi:[1,1]" % (v_, v_ + 1, sm, sm + 1, v_, v_ + 1))
            a("""v_cvt_pk_bf16_f32 v{g0}, v{g0}, v{g1}
            v_cvt_pk_bf16_f32 v{g2}, v{g2}, v{g3}
            v_cvt_pk_bf16_f32 v{u0}, v{u0}, v{u1}
            v_cvt_pk_bf16_f32 v{u2}, v{u2}, v{u3}
            v_pk_max_i16 v{g0}, v{g0}, 0
            v_pk_max_i16 v{g2}, v{g2}, 0
            v_and_b32 v{u1}, s60, v{u0}
            v_lshlrev_b32 v{u0}, 16, v{u0}
            v_and_b32 v{u3}, s60, v{u2}
            v_lshlrev_b32 v{u2}, 16, v{u2}
            v_and_b32 v{g1}, s60, v{g0}
            v_lshlrev_b32 v{g0}, 16, v{g0}
            v_and_b32 v{g3}, s60, v{g2}
            v_lshlrev_b32 v{g2}, 16, v{g2}
            v_pk_mul_f32 v[{g0}:{g1}], v[{g0}:{g1}], v[{u0}:{u1}]
            v_pk_mul_f32 v[{g2}:{g3}], v[{g2}:{g3}], v[{u2}:{u3}]
            v_cvt_pk_bf16_f32 v{o0}, v{g0}, v{g1}
            v_cvt_pk_bf16_f32 v{o1}, v{g2}, v{g3}""".format(g0=g, g1=g + 1, g2=g + 2, g3=g + 3, u0=u, u1=u + 1, u2=u + 2, u3=u + 3, o0=o, o1=o + 1))
            if ft == 2:
                a("v_and_b32 v%d, s61, v%d" % (o, o))
                a("v_and_b32 v%d, s61, v%d" % (o + 1, o + 1))
            a("v_add_u32 v160, s%d, v%d" % (56 + x, 164 + ft))
            a("ds_write_b64 v160, v[%d:%d]" % (o, o + 1))
    a("""v_lshlrev_b32 v16, 4, v0
    s_mul_i32 s52, s45, 24576
    s_add_u32 s52, s52, 0x%x
    s_add_u32 s53, s52, 12288
    s_waitcnt lgkmcnt(0)
    s_barrier""" % MHM)
    for j in range(6):
        a("ds_read_b128 v[%d:%d], v16 offset:%d" % (32 + 4 * j, 35 + 4 * j, STGO + 4096 * j))
    for j in range(6):
        a("s_waitcnt lgkmcnt(%d)" % (5 - j))
        if j == 3: pass
        a("s_add_u32 s53, s52, %d" % (4096 * j))
        a("buffer_store_dwordx4 v[%d:%d], v16, s[8:11], s53 offen sc1" % (32 + 4 * j, 35 + 4 * j))
    mega.publish(a, 3)
    srd(a, 12, P_OUT, 2097152)
    a("""s_and_b32 s50, s44, 1               ; wl
    s_lshr_b32 s51, s44, 1                ; wd
    v_lshrrev_b32 v5, 2, v3
    v_and_b32 v6, 3, v3""")
    a("""v_lshrrev_b32 v7, 3, v3
    v_lshl_add_u32 v7, v7, 1, v4          ; g + 2*(n>>3)
    s_lshl_b32 s52, s50, 5
    v_add_u32 v8, s52, v3
    v_mul_u32_u24 v8, 192, v8""")
    for ks in range(3):
        a("""v_add_u32 v9, %d, v7
        v_subrev_u32 v13, 12, v9
        v_cmp_le_u32 vcc, 12, v9
        s_nop 1
        v_cndmask_b32 v9, v9, v13, vcc
        v_lshl_add_u32 v%d, v9, 4, v8""" % (4 * ks, 10 + ks))
    a("""v_lshrrev_b32 v7, 1, v5
    v_and_b32 v8, 1, v4
    v_lshl_or_b32 v7, v8, 1, v7
    v_lshl_add_u32 v8, v4, 3, v5""")
    for dt in range(2):
        a("""s_lshl_b32 s52, s51, 1
        s_add_u32 s52, s52, %d
        v_xor_b32 v9, s52, v7
        v_lshlrev_b32 v9, 5, v9
        v_lshl_add_u32 v9, v6, 3, v9
        v_lshl_add_u32 v9, v8, 7, v9
        v_add_u32 v%d, 0x%x, v9""" % (dt, 14 + dt, B4))
    for r in range(16, 32):
        a("v_mov_b32 v%d, 0" % r)
    def acc4(dt, lt): return 16 + 4 * (2 * dt + lt)
    FB4 = [32, 80]
    def reads4(nks, fb):
        l = []
        for ks in range(nks):
            b = fb + 16 * ks
            for lt in range(2):
                l.append("ds_read_b128 v[%d:%d], v%d offset:%d" % (b + 4 * lt, b + 4 * lt + 3, 10 + ks, 3072 * lt))
            for dt in range(2):
                for rd in range(2):
                    r = b + 8 + 4 * dt + 2 * rd
                    l.append("ds_read_b64_tr_b16 v[%d:%d], v%d offset:%d" % (r, r + 1, 14 + dt, (32 * ks + 4 * rd) * 128))
        return l
    def mfmas4(nks, fb):
        l = []
        for ks in range(nks):
            b = fb + 16 * ks
            for dt in range(2):
                for lt in range(2):
                    c = acc4(dt, lt); w = b + 8 + 4 * dt; h = b + 4 * lt
                    l.append("v_mfma_f32_16x16x32_bf16 v[%d:%d], v[%d:%d], v[%d:%d], v[%d:%d]" % (c, c + 3, w, w + 3, h, h + 3, c, c + 3))
        return l
    def nks(c): return 3
    mega.poll(a, 0, 3)
    for c in range(NCH):
        a("s_barrier")
        rd = reads4(nks(c), FB4[c & 1])
        mf = mfmas4(nks(c - 1), FB4[(c - 1) & 1]) if c > 0 else []
        i = j = 0
        while i < len(rd) or j < len(mf):
            for _ in range(3):
                if i < len(rd): a(rd[i]); i += 1
            for _ in range(2):
                if j < len(mf): a(mf[j]); j += 1
        if c < NCH - 1:
            for regs, ns in (([10, 11, 12], NA4), ([14, 15], NB4)):
                d = 12288 if (c + 1) % ns else -(ns - 1) * 12288
                for r in regs:
                    if d > 0: a("v_add_u32 v%d, %d, v%d" % (r, d, r))
                    else: a("v_subrev_u32 v%d, %d, v%d" % (r, -d, r))
        a("s_waitcnt lgkmcnt(0)")
    a("""v_lshrrev_b32 v7, 1, v5
    v_lshl_add_u32 v7, v4, 1, v7
    v_and_b32 v7, 3, v7
    v_lshl_add_u32 v8, v4, 2, v5
    s_lshl_b32 s52, s51, 5
    v_add_u32 v8, s52, v8""")
    for lt in range(2):
        a("""s_lshl_b32 s52, s50, 1
        s_add_u32 s52, s52, %d
        v_xor_b32 v9, s52, v7
        v_lshlrev_b32 v9, 5, v9
        v_lshl_add_u32 v9, v6, 3, v9
        v_lshl_add_u32 v9, v8, 7, v9
        v_add_u32 v%d, 0x%x, v9""" % (lt, 10 + lt, HOFF))
    for m in mfmas4(3, FB4[(NCH - 1) & 1]): a(m)
    for dt in range(2):
        for lt in range(2):
            r = 160 + 2 * (2 * dt + lt)
            a("ds_read_b64_tr_b16 v[%d:%d], v%d offset:%d" % (r, r + 1, 10 + lt, 2048 * dt))
    a("""s_lshl_b32 s52, s50, 5
    s_add_u32 s52, s52, s72
    v_add_u32 v8, s52, v3
    v_lshlrev_b32 v8, 10, v8
    v_lshl_add_u32 v8, v4, 3, v8
    s_lshl_b32 s52, s51, 5
    s_add_u32 s52, s52, s73
    s_lshl_b32 s52, s52, 1
    s_add_u32 s53, s52, 16384
    s_nop 4
    s_waitcnt lgkmcnt(0)""")
    for dt in range(2):
        for lt in range(2):
            c = acc4(dt, lt); h = 160 + 2 * (2 * dt + lt)
            for p in range(2):
                a("""v_cvt_pk_bf16_f32 v{c0}, v{c0}, v{c1}
                v_lshlrev_b32 v170, 16, v{h}
                v_and_b32 v171, s60, v{h}
                v_and_b32 v{c1}, s60, v{c0}
                v_lshlrev_b32 v{c0}, 16, v{c0}
                v_add_f32 v{c0}, v{c0}, v170
                v_add_f32 v{c1}, v{c1}, v171
                v_cvt_pk_bf16_f32 v{h}, v{c0}, v{c1}""".format(c0=c + 2 * p, c1=c + 2 * p + 1, h=h + p))
            a("buffer_store_dwordx2 v[%d:%d], v8, s[12:15], s%d offen offset:%d" % (h, h + 1, 52 + lt, 32 * dt))

def loader(a, issueB3):
    a("v_lshrrev_b32 v5, 4, v1")
    for par in range(2):
        a("""v_add_u32 v6, %d, v5
        v_lshlrev_b32 v6, 1, v6
        v_xor_b32 v6, v6, v3
        v_lshlrev_b32 v6, 4, v6
        v_lshl_add_u32 v%d, v5, 12, v6""" % (4 * par, 10 + par))
    a("""s_lshl_b32 s52, s88, 16
    s_lshl_b32 s53, s47, 1
    s_add_u32 s52, s52, s53
    s_add_u32 s52, s52, 0x%x              ; sA
    s_lshl_b32 s54, s88, 12               ; lds A off""" % MHT)
    def issueA3(c):
        sb = (c % 4) * 16384
        for p in range(4):
            a("s_add_u32 m0, s54, %d" % (sb + 1024 * p))
            a("s_add_u32 s56, s52, %d" % (c * 64 * 4096 + p * 16384))
            a("buffer_load_dwordx4 v%d, s[8:11], s56 offen sc1 lds" % (10 + (p & 1)))
    for c in range(4): issueA3(c)
    srd(a, 4, P_WD, 1376 * 1024)
    a("""v_lshrrev_b32 v6, 3, v1
    v_and_b32 v7, 7, v1""")
    a("v_lshlrev_b32 v20, 4, v1")
    for p in range(3):
        a("""s_add_u32 s61, s88, %d
        s_and_b32 s61, s61, 1
        s_lshl_b32 s61, s61, 1
        v_and_b32 v8, 1, v5
        v_or_b32 v8, s61, v8
        v_lshlrev_b32 v8, 1, v8
        v_xor_b32 v8, v8, v7
        v_lshlrev_b32 v8, 4, v8
        v_lshl_add_u32 v%d, v6, 10, v8""" % (p, 21 + p))
    a("""v_lshlrev_b32 v8, 1, v5
    v_xor_b32 v8, v8, v7
    v_lshlrev_b32 v8, 4, v8
    v_lshl_add_u32 v26, v6, 12, v8        ; h^T voffset
    s_and_b32 s61, s45, 0xf0
    s_mul_i32 s61, s61, 24576
    s_bfe_u32 s62, s45, 0x10003
    s_mul_i32 s62, s62, 12288
    s_add_u32 s61, s61, s62
    s_mul_i32 s65, s88, 3072              ; lw*3072
    s_add_u32 s61, s61, s65
    s_add_u32 s61, s61, 0x%x              ; sA4
    s_mul_i32 s62, s88, 24576             ; lw*24 rows*1024
    s_lshl_b32 s63, s73, 1
    s_add_u32 s62, s62, s63               ; sB4
    s_lshl_b32 s63, s88, 4
    s_add_u32 s63, s63, s73
    s_lshl_b32 s63, s63, 12
    s_lshl_b32 s64, s72, 1
    s_add_u32 s63, s63, s64
    s_add_u32 s63, s63, 0x%x              ; h src
    s_lshl_b32 s64, s88, 11""" % (MHM, MHT))
    waits = [12, 8, 14, 20, 20, 20, 10, 0]
    for c in range(8):
        a("s_waitcnt vmcnt(%d)" % waits[c])
        a("s_barrier")
        if c >= 1 and c + 3 < 8:
            issueA3(c + 3); issueB3(c + 3)
    a("s_barrier")
    def issueA4(c):
        sb = (c % NA4) * 12288
        a("s_add_u32 m0, s65, %d" % sb)
        a("s_add_u32 s57, s61, %d" % (c * 24576))
        for p in range(3):
            a("buffer_load_dwordx4 v20, s[8:11], s57 offen offset:%d sc1 lds" % (1024 * p))
    def issueB4(c):
        sb = B4 + (c % NB4) * 12288
        for p in range(3):
            a("s_add_u32 m0, s65, %d" % (sb + 1024 * p))
            a("s_add_u32 s57, s62, %d" % (FT0[c] * 16 * 1024 + p * 8192))
            a("buffer_load_dwordx4 v%d, s[4:7], s57 offen lds" % (21 + p))
    for c in range(NB4): issueB4(c)
    for p in range(2):
        a("s_add_u32 m0, s64, %d" % (HOFF + 1024 * p))
        a("s_add_u32 s57, s63, %d" % (p * 8 * 4096))
        a("buffer_load_dwordx4 v26, s[8:11], s57 offen sc1 lds")
    a("s_barrier")
    a("s_barrier")
    a("s_barrier")
    for c in range(NA4): issueA4(c)
    seq = [("A", c) for c in range(NA4)]
    for c in range(NCH):
        need = seq.index(("A", c))
        if ("B", c) in seq: need = max(need, seq.index(("B", c)))
        a("s_waitcnt vmcnt(%d)" % (3 * (len(seq) - 1 - need)))
        a("s_barrier")
        if c >= 1:
            if c + NA4 - 1 < NCH: issueA4(c + NA4 - 1); seq.append(("A", c + NA4 - 1))
            if c + NB4 - 1 < NCH: issueB4(c + NB4 - 1); seq.append(("B", c + NB4 - 1))
```

```python
from common import *
GRID = 256
LDS = 163840
STATS = 0
LOG2E = 0x3fb8aa3b
INV2PI = 0x3e22f983
S = 4160
UO = 4 * S
XO = UO + 5120
CHS = XO + 4096
TABB = 2 * CHS
KNAME = "sequential_preLN__ssm_conv_s4d__glu_gated_reglu__prompt_kernel"
cnt = [0]
def uniq(p):
    cnt[0] += 1
    return "%s_%d" % (p, cnt[0])

def row_reduce16(a, vs):
    for pat in ("quad_perm:[1,0,3,2]", "quad_perm:[2,3,0,1]", "row_half_mirror", "row_mirror"):
        if len(vs) < 3: a("s_nop 1")
        for v in vs:
            a("v_add_f32_dpp v%d, v%d, v%d %s row_mask:0xf bank_mask:0xf" % (v, v, v, pat))
def allreduce64(a, vs, tmps):
    row_reduce16(a, vs)
    for ins in ("v_permlane16_swap_b32", "v_permlane32_swap_b32"):
        for v, t in zip(vs, tmps): a("v_mov_b32 v%d, v%d" % (t, v))
        a("s_nop 1")
        for v, t in zip(vs, tmps): a("%s v%d, v%d" % (ins, v, t))
        for v, t in zip(vs, tmps): a("v_add_f32 v%d, v%d, v%d" % (v, v, t))

def arrive(a, phase):
    l = uniq("PUB")
    a("""s_cmp_lg_u32 s44, 0
    s_cbranch_scc1 %s""" % l)
    if phase == 1:
        a("""s_mov_b64 exec, 1
        s_and_b32 s96, s45, 1
        s_lshl_b32 s96, s96, 7
        v_mov_b32 v252, s96
        v_mov_b32 v253, 1
        buffer_atomic_add v253, v252, s[68:71], 0 offen sc1""")
    elif phase == 2:
        a("""s_mov_b64 exec, 0xff
        s_lshr_b32 s96, s46, 5
        s_lshl_b32 s96, s96, 10
        s_add_u32 s96, s96, 0x%x
        v_lshl_add_u32 v252, v1, 7, s96
        v_mov_b32 v253, 1
        buffer_atomic_add v253, v252, s[8:11], 0 offen sc1""" % (CNT + 2048))
    else:
        a("""s_mov_b64 exec, 1
        s_lshl_b32 s96, s49, 7
        s_add_u32 s96, s96, 0x%x
        v_mov_b32 v252, s96
        v_mov_b32 v253, 1
        buffer_atomic_add v253, v252, s[8:11], 0 offen sc1""" % CNT)
    a("s_mov_b64 exec, -1")
    a.label(l)

def publish(a, phase):
    a("""s_waitcnt vmcnt(0) lgkmcnt(0)
    s_barrier""")
    arrive(a, phase)

def spin(a, phase, chunk0=0):
    l = uniq("POLL"); e = uniq("POLLE")
    if phase == 1:
        a("""v_and_b32 v252, 1, v1
        v_lshlrev_b32 v252, 7, v252
        s_mov_b32 s96, 128""")
        srdn = "s[68:71]"
    elif phase == 2:
        a("""s_and_b32 s96, s2, 7
        s_lshl_b32 s96, s96, 7
        s_add_u32 s96, s96, 0x%x
        v_and_b32 v252, 3, v1
        v_lshl_add_u32 v252, v252, 10, s96
        s_mov_b32 s96, 32""" % (CNT + 2048 + 1024 * chunk0))
        srdn = "s[8:11]"
    else:
        a("""s_lshl_b32 s96, s49, 7
        s_add_u32 s96, s96, 0x%x
        v_mov_b32 v252, s96
        s_mov_b32 s96, 16""" % CNT)
        srdn = "s[8:11]"
    a("s_mov_b32 s97, 0")
    a.label(l)
    a("""buffer_load_dword v253, v252, %s, 0 offen sc1
    s_waitcnt vmcnt(0)
    v_cmp_ne_u32 vcc, s96, v253
    s_add_u32 s97, s97, 1
    s_nop 3
    s_cmp_eq_u64 vcc, 0
    s_cbranch_scc1 %s
    s_cmp_gt_u32 s97, 0x40000
    s_cbranch_scc1 %s
    s_sleep 2
    s_branch %s""" % (srdn, e, e, l))
    a.label(e)

def poll(a, wave, phase):
    e = uniq("POLLB")
    a("s_cmp_lg_u32 s44, %d" % wave)
    a("s_cbranch_scc1 %s" % e)
    spin(a, phase)
    a.label(e)
    a("s_barrier")

def gen():
    a = Asm()
    a("s_cmp_ge_u32 s2, %d" % GRID)
    a("s_cbranch_scc1 M_EXIT")
    load_ptrs(a)
    a("""v_and_b32 v1, 63, v0                ; lane
    v_lshrrev_b32 v2, 6, v0               ; wave
    v_and_b32 v3, 15, v0                  ; n
    v_readfirstlane_b32 s44, v2
    v_bfe_u32 v4, v0, 4, 2                ; g
    s_and_b32 s50, s2, 7                  ; xcd
    s_lshr_b32 s51, s2, 3                 ; local
    s_and_b32 s49, s50, 1
    s_lshl_b32 s49, s49, 3
    s_and_b32 s52, s51, 7
    s_add_u32 s49, s49, s52               ; mt
    s_lshr_b32 s52, s50, 1
    s_lshl_b32 s52, s52, 2
    s_lshr_b32 s53, s51, 3
    s_add_u32 s52, s52, s53               ; ng
    s_lshl_b32 s45, s49, 4
    s_add_u32 s45, s45, s52               ; q
    s_lshl_b32 s46, s50, 5
    s_add_u32 s46, s46, s51               ; cp
    s_lshl_b32 s47, s49, 7                ; l0
    s_mul_i32 s48, s52, 43
    s_add_u32 s48, s48, 4
    s_lshr_b32 s48, s48, 3
    s_min_u32 s48, s48, 80
    s_lshl_b32 s48, s48, 4                ; f0
    s_lshr_b32 s72, s52, 3
    s_lshl_b32 s72, s72, 6
    s_add_u32 s72, s72, s47               ; P4 l0
    s_and_b32 s73, s52, 7
    s_lshl_b32 s73, s73, 6                ; P4 d0
    s_lshr_b32 s74, s44, 2                ; ch
    s_mul_i32 s75, s74, %d                ; KB
    s_lshl_b32 s76, s46, 1
    s_add_u32 s76, s76, s74               ; channel d
    s_waitcnt lgkmcnt(0)""" % CHS)
    srd(a, 8, P_WS, MWS_LIMIT)
    srd(a, 68, P_DBG, 256)
    srd(a, 4, P_X, 2097152)
    a("""v_lshlrev_b32 v5, 4, v1
    s_lshl_b32 s50, s2, 3
    s_add_u32 s50, s50, s44               ; row
    s_lshl_b32 s51, s50, 10
    buffer_load_dwordx4 v[8:11], v5, s[4:7], s51 offen
    v_and_b32 v6, 127, v0                 ; mode
    s_lshl_b32 s52, s76, 8
    v_lshl_add_u32 v7, v6, 1, s52
    s_lshl_b32 s52, s76, 1
    v_mov_b32 v21, s52
    global_load_ushort v12, v7, s[%d:%d]
    global_load_ushort v13, v7, s[%d:%d]
    global_load_ushort v14, v7, s[%d:%d]
    global_load_ushort v15, v7, s[%d:%d]
    global_load_ushort v16, v21, s[%d:%d]""" % (P_LAR, P_LAR + 1, P_AIM, P_AIM + 1, P_CR, P_CR + 1, P_CI, P_CI + 1, P_LDT, P_LDT + 1))
    a("s_mov_b32 s60, 0xffff0000")
    a("s_waitcnt vmcnt(5)")
    for q in range(4):
        a("v_lshlrev_b32 v%d, 16, v%d" % (24 + 2 * q, 8 + q))
        a("v_and_b32 v%d, s60, v%d" % (25 + 2 * q, 8 + q))
    a("""v_add_f32 v32, v24, v25
    v_add_f32 v33, v26, v27
    v_add_f32 v34, v28, v29
    v_add_f32 v35, v30, v31
    v_add_f32 v32, v32, v33
    v_add_f32 v34, v34, v35
    v_add_f32 v32, v32, v34""")
    allreduce64(a, [32], [33])
    a("v_mul_f32 v32, 0x3b000000, v32")
    for q in range(8):
        a("v_sub_f32 v%d, v%d, v32" % (24 + q, 24 + q))
    a("v_mul_f32 v34, v24, v24")
    a("v_mul_f32 v35, v25, v25")
    for q in range(2, 8, 2):
        a("v_fmac_f32 v34, v%d, v%d" % (24 + q, 24 + q))
        a("v_fmac_f32 v35, v%d, v%d" % (25 + q, 25 + q))
    a("v_add_f32 v34, v34, v35")
    allreduce64(a, [34], [33])
    a("""v_mul_f32 v34, 0x3b000000, v34
    v_cvt_pk_bf16_f32 v32, v32, v34
    v_and_b32 v34, s60, v32
    v_lshlrev_b32 v32, 16, v32
    v_add_f32 v34, 0x3727c5ac, v34
    v_cvt_pk_bf16_f32 v34, v34, v34
    v_lshlrev_b32 v34, 16, v34
    v_sqrt_f32 v34, v34
    s_nop 0
    v_cvt_pk_bf16_f32 v34, v34, v34
    v_lshlrev_b32 v34, 16, v34
    v_rcp_f32 v34, v34                    ; rs
    s_mul_i32 s51, s44, 2064
    v_lshl_add_u32 v6, v1, 5, s51
    s_mov_b32 s52, 0x07060302
    s_mov_b32 s53, 0x05040100""")
    for q in range(4):
        a("""v_lshlrev_b32 v24, 16, v{r}
        v_and_b32 v25, s60, v{r}
        v_sub_f32 v24, v24, v32
        v_sub_f32 v25, v25, v32
        v_cvt_pk_bf16_f32 v24, v24, v25
        v_and_b32 v25, s60, v24
        v_lshlrev_b32 v24, 16, v24
        v_mul_f32 v24, v24, v34
        v_mul_f32 v25, v25, v34
        v_cvt_pk_bf16_f32 v24, v24, v25
        v_perm_b32 v{o0}, v{r}, v24, s53
        v_perm_b32 v{o1}, v{r}, v24, s52""".format(r=8 + q, o0=36 + 2 * q, o1=37 + 2 * q))
    a("""ds_write_b128 v6, v[36:39]
    ds_write_b128 v6, v[40:43] offset:16
    v_lshrrev_b32 v6, 1, v0
    v_lshlrev_b32 v6, 2, v6
    v_and_b32 v7, 1, v0
    v_mul_u32_u24 v7, 8256, v7
    v_add_u32 v6, v6, v7
    v_mov_b32 v33, 0
    s_lshl_b32 s51, s2, 7
    s_add_u32 s51, s51, 0x%x
    s_cmp_ge_u32 s2, 80
    s_cbranch_scc1 M_NOZ
    s_cmp_lg_u32 s44, 1
    s_cbranch_scc1 M_NOZ
    s_mov_b64 exec, 1
    buffer_store_dword v33, v33, s[8:11], s51 offen sc1
    s_mov_b64 exec, -1""" % CNT)
    a.label("M_NOZ")
    a("""s_waitcnt lgkmcnt(0)
    s_barrier""")
    for j in range(2):
        for r in range(4):
            a("ds_read_b32 v%d, v6 offset:%d" % (24 + 4 * j + r, 2064 * r + 1024 * j))
    a("""v_lshlrev_b32 v6, 4, v0
    s_lshl_b32 s51, s2, 14
    s_add_u32 s52, s51, 8192
    s_waitcnt lgkmcnt(4)
    buffer_store_dwordx4 v[24:27], v6, s[8:11], s51 offen sc1
    s_waitcnt lgkmcnt(0)
    buffer_store_dwordx4 v[28:31], v6, s[8:11], s52 offen sc1""")
    a("s_load_dword s77, s[%d:%d], s46" % (P_DSK, P_DSK + 1) if False else "s_lshl_b32 s52, s46, 2\ns_load_dword s77, s[%d:%d], s52" % (P_DSK, P_DSK + 1))
    srd(a, 80, P_WG, 512 * 2752)
    srd(a, 84, P_WU, 512 * 2752)
    a("s_and_b32 s88, s44, 3               ; lw")
    a("""s_lshl_b32 s89, s48, 1                ; sB
    s_mul_i32 s90, s88, 3072""")
    a("s_mov_b32 s52, 43691")
    for p in range(3):
        a("""s_mul_i32 s53, s88, 192
        s_add_u32 s53, s53, %d
        v_add_u32 v6, s53, v1
        v_mul_lo_u32 v7, v6, s52
        v_lshrrev_b32 v7, 19, v7
        v_mul_u32_u24 v8, 12, v7
        v_sub_u32 v6, v6, v8
        v_bfe_u32 v8, v7, 2, 1
        v_lshlrev_b32 v8, 1, v8
        v_xor_b32 v6, v6, v8
        v_mul_u32_u24 v7, 2752, v7
        v_lshl_add_u32 v%d, v6, 4, v7""" % (64 * p, 244 + p))
    def issueB3(c):
        sb = 65536 + (c % 4) * 24576
        a("s_add_u32 s56, s89, %d" % (c * 64 * 2752))
        for mat in range(2):
            for p in range(3):
                a("s_add_u32 m0, s90, %d" % (sb + 12288 * mat + 1024 * p))
                a("s_nop 0")
                a("buffer_load_dwordx4 v%d, s[%d:%d], s56 offen lds" % (244 + p, 80 + 4 * mat, 83 + 4 * mat))
    a("""s_cmp_lt_u32 s44, 4
    s_cselect_b32 s92, s80, s84
    s_cselect_b32 s93, s81, s85
    s_mov_b32 s94, s82
    s_mov_b32 s95, s83
    s_mul_i32 s91, s74, 12288
    s_add_u32 s91, s91, s90""")
    pf = [(c, p) for c in range(4) for p in range(3)]
    def pf1():
        c, p = pf.pop(0)
        a("s_add_u32 m0, s91, %d" % (65536 + c * 24576 + 1024 * p))
        a("s_add_u32 s56, s89, %d" % (c * 64 * 2752))
        a("buffer_load_dwordx4 v%d, s[92:95], s56 offen lds" % (244 + p))
    PT, HTAB = UO + 1024, XO
    a("""v_and_b32 v5, 255, v0               ; t256
    v_and_b32 v10, 7, v3
    v_lshrrev_b32 v18, 3, v3
    v_lshl_add_u32 v10, v18, 7, v10       ; H0
    v_lshrrev_b32 v18, 2, v3
    v_lshlrev_b32 v18, 7, v18
    v_and_b32 v19, 3, v3
    v_lshl_add_u32 v18, v19, 1, v18
    v_add_u32 v18, 256, v18
    v_subrev_u32 v19, 8, v3
    v_lshrrev_b32 v19, 1, v19
    v_lshlrev_b32 v19, 7, v19
    v_and_b32 v20, 1, v3
    v_lshl_add_u32 v19, v20, 2, v19
    v_add_u32 v19, 512, v19
    v_cmp_gt_u32 vcc, 8, v3
    v_lshlrev_b32 v17, 7, v3
    v_add_u32 v17, 1024, v17              ; H2
    v_cndmask_b32 v11, v19, v18, vcc      ; H1
    v_lshl_add_u32 v18, v3, 2, s75
    v_lshlrev_b32 v19, 1, v10
    v_lshlrev_b32 v20, 1, v11
    v_lshlrev_b32 v21, 1, v17
    ds_write_b32 v18, v19 offset:%d
    ds_write_b32 v18, v20 offset:%d
    ds_write_b32 v18, v21 offset:%d
    v_lshlrev_b32 v9, 3, v3
    v_cvt_f32_u32 v10, v10
    v_cvt_f32_u32 v11, v11
    v_cvt_f32_u32 v8, v17
    v_cvt_f32_u32 v9, v9
    s_mov_b32 s52, 0x%x
    s_mov_b32 s53, 0x%x
    v_lshlrev_b32 v12, 16, v12
    v_lshlrev_b32 v13, 16, v13
    v_lshlrev_b32 v14, 16, v14
    v_lshlrev_b32 v15, 16, v15
    v_lshlrev_b32 v16, 16, v16
    v_mul_f32 v12, s52, v12
    v_mul_f32 v16, s52, v16
    v_exp_f32 v12, v12
    v_exp_f32 v16, v16
    s_nop 0
    v_cvt_pk_bf16_f32 v12, v12, v16
    v_and_b32 v16, 0xffff0000, v12
    v_lshlrev_b32 v12, 16, v12
    v_mul_f32 v12, v12, v16
    v_mul_f32 v13, v13, v16
    v_mul_f32 v14, v14, v16
    v_mul_f32 v15, v15, v16
    v_mul_f32 v20, s52, v12
    v_sub_f32 v20, 0, v20
    v_mul_f32 v21, s53, v13
    v_add_f32 v22, v14, v14
    v_add_f32 v23, v15, v15
    v_and_b32 v6, 127, v0
    v_lshl_add_u32 v6, v6, 4, s75
    ds_write_b128 v6, v[20:23] offset:%d
    s_and_b32 s52, s44, 3
    s_lshl_b32 s52, s52, 9
    s_add_u32 s52, s52, s75
    v_lshl_add_u32 v6, v4, 7, s52
    s_waitcnt vmcnt(0) lgkmcnt(0)
    s_barrier""" % (HTAB, HTAB + 64, HTAB + 128, LOG2E, INV2PI, PT))
    arrive(a, 1)
    for q in range(8):
        a("ds_read_b128 v[%d:%d], v6 offset:%d" % (24 + 4 * q, 27 + 4 * q, PT + 16 * q))
    for r in range(12):
        a("v_mov_b32 v%d, 0" % (56 + r))
    for q in range(8):
        P = 24 + 4 * q
        a("s_waitcnt lgkmcnt(%d)" % (7 - q))
        pf1()
        o = 8 * (q & 1) + 80
        srcs = [10, 11, 8, 9]
        for t in range(4):
            a("v_mul_f32 v%d, v%d, v%d" % (68 + t, P, srcs[t]))
            a("v_mul_f32 v%d, v%d, v%d" % (72 + t, P + 1, srcs[t]))
        for t in range(4):
            a("v_exp_f32 v%d, v%d" % (68 + t, 68 + t))
            a("v_fract_f32 v%d, v%d" % (72 + t, 72 + t))
        for t in range(4):
            a("v_cos_f32 v%d, v%d" % (76 + t, 72 + t))
            a("v_sin_f32 v%d, v%d" % (72 + t, 72 + t))
        for t in range(3):
            a("v_mul_f32 v%d, v%d, v%d" % (96 + t, 68 + t, P + 2))
            a("v_mul_f32 v%d, v%d, v%d" % (68 + t, 68 + t, P + 3))
        a("v_mul_f32 v%d, v71, v79" % (o + 6))
        a("v_mul_f32 v%d, v71, v75" % (o + 7))
        for t in range(3):
            a("v_mul_f32 v%d, v%d, v%d" % (100 + t, 68 + t, 72 + t))
            a("v_mul_f32 v%d, v%d, v%d" % (104 + t, 68 + t, 76 + t))
        for t in range(3):
            a("v_fma_f32 v%d, v%d, v%d, -v%d" % (o + 2 * t, 96 + t, 76 + t, 100 + t))
            a("v_fma_f32 v%d, -v%d, v%d, -v%d" % (o + 2 * t + 1, 96 + t, 72 + t, 104 + t))
        if q & 1:
            j = q >> 1
            for k in range(8):
                a("v_cvt_pk_bf16_f32 v%d, v%d, v%d" % (112 + 8 * k + j, 80 + k, 88 + k))
            for k in range(8):
                a("v_lshlrev_b32 v%d, 16, v%d" % (96 + (k & 1), 112 + 8 * k + j))
                a("v_and_b32 v%d, s60, v%d" % (98 + (k & 1), 112 + 8 * k + j))
                a("v_sub_f32 v%d, v%d, v%d" % (80 + k, 80 + k, 96 + (k & 1)))
                a("v_sub_f32 v%d, v%d, v%d" % (88 + k, 88 + k, 98 + (k & 1)))
            for k in range(8):
                a("v_cvt_pk_bf16_f32 v%d, v%d, v%d" % (116 + 8 * k + j, 80 + k, 88 + k))
    a("s_nop 1")
    for part in range(2):
        B = 112 + 8 * (6 + part)
        for (ah, bl) in ((0, 0), (0, 4), (4, 0)):
            for t in range(3):
                A = 112 + 8 * (2 * t + part) + ah
                a("v_mfma_f32_16x16x32_bf16 v[%d:%d], v[%d:%d], v[%d:%d], v[%d:%d]" % (56 + 4 * t, 59 + 4 * t, A, A + 3, B + bl, B + bl + 3, 56 + 4 * t, 59 + 4 * t))
    a("""s_and_b32 s52, s44, 3
    s_mul_i32 s52, s52, 3072
    s_add_u32 s52, s52, s75
    v_lshl_add_u32 v6, v1, 4, s52         ; partial write addr
    v_lshl_add_u32 v7, v5, 4, s75         ; KB + t*16
    v_lshrrev_b32 v8, 6, v5
    v_lshlrev_b32 v8, 6, v8
    v_lshl_add_u32 v8, v4, 4, v8
    v_add_u32 v8, s75, v8                 ; htab addr
    s_mul_i32 s53, s74, 6144
    s_add_u32 s53, s53, %d                ; TAB
    v_lshl_add_u32 v9, v3, 4, s53         ; TAB + 16n
    s_nop 7
    s_nop 3""" % TABB)
    for t in range(3):
        a("ds_write_b128 v6, v[%d:%d] offset:%d" % (56 + 4 * t, 59 + 4 * t, 1024 * t))
    a("""v_lshlrev_b32 v6, 3, v5
    v_sub_u32 v6, 2047, v6""")
    for e in range(12):
        a("v_subrev_u32 v%d, %d, v6" % (24 + e, min(e, 10)))
        a("v_cvt_f32_i32 v%d, v%d" % (24 + e, 24 + e))
    for e in range(0, 12, 2):
        a("v_cvt_pk_bf16_f32 v%d, v%d, v%d" % (40 + e // 2, 24 + e, 25 + e))
    for e in range(11):
        if e % 2 == 0: a("v_lshlrev_b32 v%d, 16, v%d" % (24 + e, 40 + e // 2))
        else: a("v_and_b32 v%d, 0xffff0000, v%d" % (24 + e, 40 + e // 2))
    for e in range(11):
        a("v_cvt_u32_f32 v%d, v%d" % (24 + e, 24 + e))
        a("v_lshl_add_u32 v%d, v%d, 1, s53" % (24 + e, 24 + e))
    a("""s_waitcnt lgkmcnt(0)
    s_barrier
    v_cmp_gt_u32 vcc, 192, v5
    s_and_saveexec_b64 s[54:55], vcc
    s_cbranch_execz M_KG_C2""")
    for w in range(4):
        a("ds_read_b128 v[%d:%d], v7 offset:%d" % (56 + 4 * w, 59 + 4 * w, 3072 * w))
    a("ds_read_b128 v[72:75], v8 offset:%d" % HTAB)
    a("s_waitcnt lgkmcnt(0)")
    for r in range(4):
        a("v_add_f32 v%d, v%d, v%d" % (56 + r, 56 + r, 60 + r))
        a("v_add_f32 v%d, v%d, v%d" % (64 + r, 64 + r, 68 + r))
    for r in range(4):
        a("v_add_f32 v%d, v%d, v%d" % (56 + r, 56 + r, 64 + r))
        a("v_add_u32 v%d, v%d, v9" % (72 + r, 72 + r))
    a("""v_cvt_pk_bf16_f32 v56, v56, v57
    v_cvt_pk_bf16_f32 v58, v58, v59
    ds_write_b16 v72, v56
    ds_write_b16_d16_hi v73, v56
    ds_write_b16 v74, v58
    ds_write_b16_d16_hi v75, v58""")
    a.label("M_KG_C2")
    a("""s_mov_b64 exec, s[54:55]
    s_waitcnt lgkmcnt(0)
    s_barrier""")
    for e in range(11):
        a("ds_read_u16 v%d, v%d" % (44 + e, 24 + e))
    a("""v_mov_b32 v64, 0
    v_mov_b32 v65, 0
    v_mov_b32 v66, 0
    v_mov_b32 v67, 0
    v_cmp_eq_u32 vcc, 255, v5
    v_lshl_add_u32 v8, v1, 4, s75         ; KB + lane*16 (u pad zero)
    v_lshrrev_b32 v9, 2, v1
    v_mul_u32_u24 v9, %d, v9
    v_and_b32 v10, 3, v1
    v_lshl_add_u32 v9, v10, 4, v9
    v_add_u32 v9, s75, v9
    s_waitcnt lgkmcnt(0)
    v_cndmask_b32 v52, v52, v64, vcc
    v_cndmask_b32 v53, v53, v64, vcc
    v_cndmask_b32 v54, v54, v64, vcc""" % S)
    for c in range(4):
        for j in range(4):
            a("v_lshl_or_b32 v%d, v%d, 16, v%d" % (68 + 4 * c + j, 45 + c + 2 * j, 44 + c + 2 * j))
        a("ds_write_b128 v7, v[%d:%d] offset:%d" % (68 + 4 * c, 71 + 4 * c, c * S))
    a("""ds_write_b128 v8, v[64:67] offset:%d
    v_cmp_gt_u32 vcc, 16, v1
    s_and_saveexec_b64 s[54:55], vcc
    ds_write_b128 v9, v[64:67] offset:4096
    s_mov_b64 exec, s[54:55]""" % UO)
    poll(a, 0, 1)
    a("""v_lshrrev_b32 v5, 2, v0
    v_and_b32 v6, 3, v0
    v_lshlrev_b32 v7, 14, v5
    v_lshl_add_u32 v7, v6, 4, v7          ; piece*16384 + quarter*16
    s_lshl_b32 s52, s46, 6
    s_add_u32 s53, s52, 0x200000
    buffer_load_dwordx4 v[8:11], v7, s[8:11], s52 offen sc1
    buffer_load_dwordx4 v[12:15], v7, s[8:11], s53 offen sc1
    v_lshlrev_b32 v5, 4, v5               ; piece*8 rows*2B
    v_and_b32 v7, 1, v6
    v_lshl_add_u32 v5, v7, 3, v5          ; + half*8
    v_lshrrev_b32 v6, 1, v6
    v_mul_u32_u24 v6, %d, v6
    v_add_u32 v5, v5, v6                  ; + ch*CHS
    s_mov_b32 s52, 0x07060302
    s_mov_b32 s53, 0x05040100""" % CHS)
    for j in range(2):
        b = 8 + 4 * j
        a("""s_waitcnt vmcnt({w})
        v_perm_b32 v16, v{b1}, v{b0}, s53
        v_perm_b32 v17, v{b3}, v{b2}, s53
        v_perm_b32 v18, v{b1}, v{b0}, s52
        v_perm_b32 v19, v{b3}, v{b2}, s52
        ds_write_b64 v5, v[16:17] offset:{ou}
        ds_write_b64 v5, v[18:19] offset:{ox}""".format(w=1 - j, b0=b, b1=b + 1, b2=b + 2, b3=b + 3, ou=UO + 1024 + 2048 * j, ox=XO + 2048 * j))
    a("""s_bfe_u32 s50, s44, 0x10001           ; mt
    s_and_b32 s51, s44, 1                 ; hf
    v_and_b32 v14, 3, v3
    v_sub_u32 v14, 3, v14
    v_mul_u32_u24 v14, %d, v14
    v_lshrrev_b32 v15, 2, v3
    v_lshlrev_b32 v15, 3, v15
    v_sub_u32 v14, v14, v15
    v_lshl_add_u32 v14, v4, 4, v14
    s_lshl_b32 s52, s51, 9
    s_sub_u32 s53, s75, s52
    s_lshl_b32 s54, s50, 5
    s_sub_u32 s54, s53, s54
    s_add_u32 s54, s54, %d
    v_add_u32 v14, s54, v14               ; vA
    v_lshlrev_b32 v15, 6, v3
    v_lshl_add_u32 v15, v4, 4, v15
    s_add_u32 s53, s53, %d
    v_add_u32 v15, s53, v15               ; vB""" % (S, 4088 - 448 - 3072, UO + 1024 - 448))
    for r in range(16):
        a("v_mov_b32 v%d, 0" % (16 + r))
    a("""s_waitcnt lgkmcnt(0)
    s_barrier""")
    FB = [32, 64]
    def cloads(t, fb):
        l = []
        for q in range(4):
            l.append("ds_read_b128 v[%d:%d], v15 offset:%d" % (fb + 4 * q, fb + 4 * q + 3, 64 * (7 - t) + 1024 * q))
        for j in range(4):
            r = fb + 16 + 4 * j
            off = 64 * (7 - t) + 1024 * (3 - j)
            l.append("ds_read_b64 v[%d:%d], v14 offset:%d" % (r, r + 1, off))
            l.append("ds_read_b64 v[%d:%d], v14 offset:%d" % (r + 2, r + 3, off + 8))
        return l
    for l in cloads(0, FB[0]): a(l)
    for t in range(8):
        fb = FB[t & 1]
        a("s_waitcnt lgkmcnt(0)")
        mf = []
        for j in range(4):
            for nt in range(j, 4):
                r = fb + 16 + 4 * j; b = fb + 4 * (nt - j); c = 16 + 4 * nt
                mf.append("v_mfma_f32_16x16x32_bf16 v[%d:%d], v[%d:%d], v[%d:%d], v[%d:%d]" % (c, c + 3, r, r + 3, b, b + 3, c, c + 3))
        ld = cloads(t + 1, FB[(t + 1) & 1]) if t < 7 else []
        for k in range(12):
            if k < len(ld): a(ld[k])
            if k < 10: a(mf[k])
        if t in (0, 2, 4, 6): pf1()
    a("""s_and_b32 s52, s44, 3
    s_lshl_b32 s53, s52, 11
    s_add_u32 s53, s53, s75
    s_xor_b32 s52, s52, 1
    s_lshl_b32 s52, s52, 11
    s_add_u32 s52, s52, s75
    v_lshl_add_u32 v7, v1, 4, s53         ; write
    v_lshl_add_u32 v8, v1, 4, s52         ; read
    v_lshlrev_b32 v9, 6, v3
    v_lshl_add_u32 v9, v4, 3, v9
    s_lshl_b32 s52, s51, 11
    s_lshl_b32 s53, s50, 5
    s_add_u32 s52, s52, s53
    s_add_u32 s52, s52, s75
    v_add_u32 v9, s52, v9
    s_lshl_b32 s52, s74, 4
    s_lshr_b32 s77, s77, s52
    s_lshl_b32 s77, s77, 16               ; D_skip
    s_barrier
    s_cmp_eq_u32 s51, 0
    s_cbranch_scc1 M_RW0
    ds_write_b128 v7, v[16:19]
    ds_write_b128 v7, v[20:23] offset:1024""")
    for r in range(8): a("v_mov_b32 v%d, v%d" % (16 + r, 24 + r))
    a("s_branch M_RJ")
    a.label("M_RW0")
    a("""ds_write_b128 v7, v[24:27]
    ds_write_b128 v7, v[28:31] offset:1024""")
    a.label("M_RJ")
    for t in range(2):
        a("ds_read_b64 v[%d:%d], v9 offset:%d" % (40 + 2 * t, 41 + 2 * t, UO + 1024 + 1024 * t))
        a("ds_read_b64 v[%d:%d], v9 offset:%d" % (44 + 2 * t, 45 + 2 * t, XO + 1024 * t))
    a("""s_waitcnt lgkmcnt(0)
    s_barrier
    ds_read_b128 v[32:35], v8
    ds_read_b128 v[36:39], v8 offset:1024
    s_waitcnt lgkmcnt(0)""")
    for r in range(8): a("v_add_f32 v%d, v%d, v%d" % (16 + r, 16 + r, 32 + r))
    for t in range(2):
        for p in range(2):
            y0, y1 = 16 + 4 * t + 2 * p, 17 + 4 * t + 2 * p
            u = 40 + 2 * t + p; x = 44 + 2 * t + p
            a("""v_cvt_pk_bf16_f32 v{y0}, v{y0}, v{y1}
            v_lshlrev_b32 v50, 16, v{u}
            v_and_b32 v51, s60, v{u}
            v_mul_f32 v50, s77, v50
            v_mul_f32 v51, s77, v51
            v_cvt_pk_bf16_f32 v50, v50, v51
            v_and_b32 v{y1}, s60, v{y0}
            v_lshlrev_b32 v{y0}, 16, v{y0}
            v_and_b32 v51, s60, v50
            v_lshlrev_b32 v50, 16, v50
            v_add_f32 v{y0}, v{y0}, v50
            v_add_f32 v{y1}, v{y1}, v51
            v_cvt_pk_bf16_f32 v{y0}, v{y0}, v{y1}
            v_lshlrev_b32 v50, 16, v{x}
            v_and_b32 v51, s60, v{x}
            v_and_b32 v{y1}, s60, v{y0}
            v_lshlrev_b32 v{y0}, 16, v{y0}
            v_add_f32 v{y0}, v{y0}, v50
            v_add_f32 v{y1}, v{y1}, v51
            v_cvt_pk_bf16_f32 v{o}, v{y0}, v{y1}""".format(y0=y0, y1=y1, u=u, x=x, o=52 + 2 * t + p))
        a("ds_write_b64 v9, v[%d:%d] offset:%d" % (52 + 2 * t, 53 + 2 * t, XO + 1024 * t))
    a("""v_and_b32 v5, 255, v0
    v_lshl_add_u32 v5, v5, 4, s75
    v_lshlrev_b32 v6, 4, v0
    s_lshl_b32 s52, s46, 13
    s_add_u32 s52, s52, 0x%x
    s_waitcnt lgkmcnt(0)
    s_barrier
    ds_read_b128 v[8:11], v5 offset:%d
    s_waitcnt lgkmcnt(0)
    buffer_store_dwordx4 v[8:11], v6, s[8:11], s52 offen sc1""" % (MHT, XO))
    publish(a, 2)
    srd(a, 4, P_WD, 1376 * 1024)
    a("""s_lshr_b32 s52, s2, 3
    s_mul_i32 s52, s52, 43
    s_mul_i32 s53, s44, 6
    s_add_u32 s52, s52, s53
    s_sub_u32 s52, s52, 5
    s_lshl_b32 s52, s52, 10
    s_and_b32 s53, s73, 0x100
    s_lshl_b32 s53, s53, 1
    s_add_u32 s52, s52, s53
    v_lshrrev_b32 v5, 5, v1
    v_and_b32 v6, 31, v1
    v_lshlrev_b32 v6, 4, v6
    v_lshl_add_u32 v5, v5, 10, v6
    s_cmp_eq_u32 s44, 0
    s_cbranch_scc1 M_NOWARM
    buffer_load_dwordx4 v[172:175], v5, s[4:7], s52 offen
    buffer_load_dwordx4 v[176:179], v5, s[4:7], s52 offen offset:2048
    s_add_u32 s52, s52, 4096
    buffer_load_dwordx4 v[180:183], v5, s[4:7], s52 offen""")
    a.label("M_NOWARM")
    poll(a, 0, 2)
    a("s_cmp_ge_u32 s44, 4")
    a("s_cbranch_scc1 M_LOADER")
    import mega34
    mega34.consumer(a)
    a("s_endpgm")
    a.label("M_LOADER")
    mega34.loader(a, issueB3)
    a.label("M_EXIT")
    a("s_endpgm")
    return kernel_header(KNAME) + a.text() + kernel_desc(KNAME, 256, 100)
```

```python
from common import *
import mega
BB = 65536
RS3 = 208
STGO = 1024
NCH = 16
HOFF = 65536
B4 = 73728
NA4, NB4 = 5, 7
CSL = 25600
SLOT = [12288 * i for i in range(5)] + [B4 + 12288 * i for i in range(7)]
NAI, NBI = 5, 7
def schedule4():
    where = {}
    for c in range(NAI): where[("A", c)] = c
    for c in range(NBI): where[("B", c)] = NAI + c
    issues = {}
    for k in range(2, 16):
        issues[k] = []
        for kind, n0 in (("B", NBI), ("A", NAI)):
            c = k - 2 + n0
            if c < 16:
                where[(kind, c)] = where[(kind, k - 2)]; issues[k].append((kind, c))
    return where, issues
WHERE, ISSUES = schedule4()
FT0 = [min((43 * j + 4) >> 3, 80) for j in range(16)]

def consumer(a):
    a("""s_and_b32 s50, s44, 1               ; wm
    s_lshr_b32 s51, s44, 1                ; wn
    v_lshrrev_b32 v5, 2, v3               ; r
    v_and_b32 v6, 3, v3                   ; cc
    v_lshl_add_u32 v7, v4, 2, v5          ; 4g + r
    v_and_b32 v8, 7, v7""")
    for x in range(4):
        a("""s_lshl_b32 s52, s51, 1
        s_add_u32 s52, s52, %d
        s_and_b32 s52, s52, 3
        s_lshl_b32 s53, s50, 2
        s_add_u32 s52, s52, s53
        v_xor_b32 v9, s52, v8
        v_lshlrev_b32 v9, 5, v9
        v_lshl_add_u32 v9, v6, 3, v9
        v_lshl_add_u32 v%d, v7, 8, v9""" % (x, 10 + x))
    a("v_and_b32 v8, 1, v4")
    for ft in range(3):
        a("""s_mul_i32 s52, s51, 3
        s_add_u32 s52, s52, %d
        v_xor_b32 v9, s52, v8
        v_lshlrev_b32 v9, 5, v9
        v_lshl_add_u32 v9, v6, 3, v9
        v_mul_u32_u24 v%d, 192, v7
        v_add_u32 v%d, v%d, v9
        v_add_u32 v%d, 0x%x, v%d""" % (ft, 236 + ft, 236 + ft, 236 + ft, 236 + ft, BB, 236 + ft))
    for r in range(16, 128):
        a("v_mov_b32 v%d, 0" % r)
    for r in range(128, 132):
        a("v_mov_b32 v%d, 0x3f803f80" % r)
    for r in range(240, 252):
        a("v_mov_b32 v%d, 0" % r)
    def acc(x, ft, mat): return 16 + 4 * ((x * 3 + ft) * 2 + mat)
    FB = [132, 172]
    def reads(ks, fb):
        l = []
        for x in range(4):
            for rd in range(2):
                l.append("ds_read_b64_tr_b16 v[%d:%d], v%d offset:%d" % (fb + 4 * x + 2 * rd, fb + 4 * x + 2 * rd + 1, 10 + x, (32 * ks + 16 * rd) * 256))
        for ft in range(3):
            for mat in range(2):
                for rd in range(2):
                    r = fb + 16 + 4 * (2 * ft + mat) + 2 * rd
                    l.append("ds_read_b64_tr_b16 v[%d:%d], v%d offset:%d" % (r, r + 1, 236 + ft, 12288 * mat + (32 * ks + 16 * rd) * 192))
        return l
    def mfmas(fb):
        l = []
        for ft in range(3):
            for mat in range(2):
                for x in range(4):
                    c = acc(x, ft, mat); w = fb + 16 + 4 * (2 * ft + mat); h = fb + 4 * x
                    l.append("v_mfma_f32_16x16x32_bf16 v[%d:%d], v[%d:%d], v[%d:%d], v[%d:%d]" % (c, c + 3, w, w + 3, h, h + 3, c, c + 3))
        for x in range(2):
            h = fb + 4 * x
            l.append("v_mfma_f32_16x16x32_bf16 v[%d:%d], v[%d:%d], v[%d:%d], v[%d:%d]" % (112 + 4 * x, 115 + 4 * x, h, h + 3, h, h + 3, 112 + 4 * x, 115 + 4 * x))
            l.append("v_mfma_f32_16x16x32_bf16 v[%d:%d], v[128:131], v[%d:%d], v[%d:%d]" % (120 + 4 * x, 123 + 4 * x, h, h + 3, 120 + 4 * x, 123 + 4 * x))
        return l
    def inter(m, r, fb):
        for i, x in enumerate(m):
            a(x)
            if i < len(r): a(r[i])
        l1 = mega.uniq("CS"); l2 = mega.uniq("CS")
        a("s_cmp_eq_u32 s50, 0")
        a("s_cbranch_scc0 %s" % l1)
        for mat in range(2):
            for ft in range(3):
                w = fb + 16 + 4 * (2 * ft + mat); c = 240 + 4 * ft
                a("v_mfma_f32_16x16x32_bf16 v[%d:%d], v[%d:%d], v[128:131], v[%d:%d]" % (c, c + 3, w, w + 3, c, c + 3))
            if mat == 0:
                a("s_branch %s" % l2)
                a.label(l1)
        a.label(l2)
    a("s_waitcnt vmcnt(0)")
    a("s_barrier")
    for l in reads(0, FB[0]): a(l)
    for c in range(8):
        a("s_waitcnt lgkmcnt(0)")
        inter(mfmas(FB[0]), reads(1, FB[1]), FB[0])
        a("s_waitcnt lgkmcnt(0)")
        if c < 7:
            a("s_barrier")
            for regs, st in (([10, 11, 12, 13], 16384), ([236, 237, 238], 24576)):
                d = st if (c + 1) % 4 else -3 * st
                for r in regs:
                    if d > 0: a("v_add_u32 v%d, %d, v%d" % (r, d, r))
                    else: a("v_subrev_u32 v%d, %d, v%d" % (r, -d, r))
            inter(mfmas(FB[1]), reads(0, FB[0]), FB[1])
        else:
            inter(mfmas(FB[1]), [], FB[1])
    a("""s_lshl_b32 s52, s50, 6
    s_lshl_b32 s53, s51, 5
    s_add_u32 s52, s52, s53
    v_add_u32 v9, s52, v3
    v_lshlrev_b32 v9, 3, v9
    v_and_b32 v6, 3, v3
    v_lshrrev_b32 v5, 2, v3
    s_nop 7""")
    for x in range(2):
        g = 112 + 4 * x
        a("""v_cmp_eq_u32 vcc, 1, v6
        s_nop 1
        v_cndmask_b32 v{t}, v{g0}, v{g1}, vcc
        v_cmp_eq_u32 vcc, 2, v6
        s_nop 1
        v_cndmask_b32 v{t}, v{t}, v{g2}, vcc
        v_cmp_eq_u32 vcc, 3, v6
        s_nop 1
        v_cndmask_b32 v{t}, v{t}, v{g3}, vcc
        v_mov_b32 v{s}, v{sm}""".format(t=133 + 2 * x, s=132 + 2 * x, g0=g, g1=g + 1, g2=g + 2, g3=g + 3, sm=120 + 4 * x))
    a("""v_cmp_eq_u32 vcc, v4, v5
    s_and_saveexec_b64 s[54:55], vcc
    ds_write_b64 v9, v[132:133]
    ds_write_b64 v9, v[134:135] offset:128
    s_mov_b64 exec, s[54:55]
    s_mul_i32 s52, s50, 384
    s_mul_i32 s53, s51, 192
    s_add_u32 s52, s52, s53
    v_lshl_add_u32 v9, v4, 4, s52
    v_cmp_eq_u32 vcc, 0, v3
    s_and_saveexec_b64 s[54:55], vcc
    ds_write_b128 v9, v[240:243] offset:25600
    ds_write_b128 v9, v[244:247] offset:25664
    ds_write_b128 v9, v[248:251] offset:25728
    s_mov_b64 exec, s[54:55]
    s_lshl_b32 s52, s50, 6
    v_add_u32 v9, s52, v3
    v_mul_u32_u24 v8, 192, v9
    v_lshlrev_b32 v9, 3, v9
    s_waitcnt lgkmcnt(0)
    s_barrier""")
    for x in range(4):
        a("""s_lshl_b32 s52, s51, 1
        s_add_u32 s52, s52, %d
        s_and_b32 s52, s52, 3
        s_mul_i32 s%d, s52, %d
        s_lshl_b32 s52, s52, 7
        v_add_u32 v7, s52, v9
        ds_read_b64 v[%d:%d], v7""" % (x, 56 + x, 16 * 192, 132 + 2 * x, 133 + 2 * x))
    a("""s_mul_i32 s52, s51, 192
    v_lshl_add_u32 v7, v4, 4, s52""")
    for ft in range(3):
        for mat in range(2):
            r = 212 + 4 * (2 * ft + mat)
            a("ds_read_b128 v[%d:%d], v7 offset:%d" % (r, r + 3, CSL + 384 * mat + 64 * ft))
    a("""v_lshrrev_b32 v5, 1, v4
    v_lshrrev_b32 v6, 3, v3
    v_lshl_add_u32 v5, v6, 1, v5
    s_mul_i32 s52, s51, 6
    v_add_u32 v5, s52, v5
    v_and_b32 v6, 1, v4
    v_lshl_add_u32 v8, v6, 3, v8
    v_add_u32 v8, %d, v8""" % STGO)
    for ft in range(3):
        a("""v_add_u32 v6, %d, v5
        v_subrev_u32 v7, 12, v6
        v_cmp_le_u32 vcc, 12, v6
        s_nop 1
        v_cndmask_b32 v6, v6, v7, vcc
        v_lshl_add_u32 v%d, v6, 4, v8""" % (2 * ft, 164 + ft))
    a("""s_and_b32 s52, s45, 15
    s_add_u32 s52, s52, 1
    s_mul_i32 s52, s52, 43
    s_add_u32 s52, s52, 4
    s_lshr_b32 s52, s52, 3
    s_min_u32 s52, s52, 80
    s_lshl_b32 s52, s52, 4
    s_and_b32 s53, s45, 15
    s_cmp_eq_u32 s53, 15
    s_cselect_b32 s52, 1376, s52
    s_sub_u32 s52, s52, s48
    s_cmp_eq_u32 s52, 80
    s_cselect_b32 s52, 0, -1
    s_cmp_eq_u32 s51, 1
    s_cselect_b32 s61, s52, -1
    s_waitcnt vmcnt(0) lgkmcnt(0)""")
    for x in range(4):
        sm, sq = 132 + 2 * x, 133 + 2 * x
        a("""v_mul_f32 v{sm}, 0x3b000000, v{sm}
        v_mul_f32 v{sq}, 0x3b000000, v{sq}
        v_fma_f32 v{sq}, -v{sm}, v{sm}, v{sq}
        v_max_f32 v{sq}, 0, v{sq}
        v_cvt_pk_bf16_f32 v{sm}, v{sm}, v{sq}
        v_and_b32 v{sq}, s60, v{sm}
        v_lshlrev_b32 v{sm}, 16, v{sm}
        v_add_f32 v{sq}, 0x3727c5ac, v{sq}
        v_cvt_pk_bf16_f32 v{sq}, v{sq}, v{sq}
        v_lshlrev_b32 v{sq}, 16, v{sq}
        v_sqrt_f32 v{sq}, v{sq}
        s_nop 0
        v_cvt_pk_bf16_f32 v{sq}, v{sq}, v{sq}
        v_lshlrev_b32 v{sq}, 16, v{sq}
        v_rcp_f32 v{sq}, v{sq}""".format(sm=sm, sq=sq))
    for x in range(4):
        sm, rs = 132 + 2 * x, 133 + 2 * x
        a("v_mul_f32 v%d, v%d, v%d" % (rs, rs, rs))
        for ft in range(3):
            g = acc(x, ft, 0); u = acc(x, ft, 1); cg = 212 + 8 * ft; cu = cg + 4
            o = 142 + 2 * ((x * 3 + ft) % 8)
            for r in range(4):
                a("v_fma_f32 v%d, -v%d, v%d, v%d" % (g + r, sm, cg + r, g + r))
                a("v_fma_f32 v%d, -v%d, v%d, v%d" % (u + r, sm, cu + r, u + r))
            for r in range(4):
                a("v_max_f32 v%d, 0, v%d" % (g + r, g + r))
                a("v_mul_f32 v%d, v%d, v%d" % (u + r, u + r, rs))
            for r in range(4):
                a("v_mul_f32 v%d, v%d, v%d" % (g + r, g + r, u + r))
            a("v_cvt_pk_bf16_f32 v%d, v%d, v%d" % (o, g, g + 1))
            a("v_cvt_pk_bf16_f32 v%d, v%d, v%d" % (o + 1, g + 2, g + 3))
            if ft == 2:
                a("v_and_b32 v%d, s61, v%d" % (o, o))
                a("v_and_b32 v%d, s61, v%d" % (o + 1, o + 1))
            a("v_add_u32 v160, s%d, v%d" % (56 + x, 164 + ft))
            a("ds_write_b64 v160, v[%d:%d]" % (o, o + 1))
    a("""v_lshlrev_b32 v16, 4, v0
    s_mul_i32 s52, s45, 24576
    s_add_u32 s52, s52, 0x%x
    s_add_u32 s53, s52, 12288
    s_waitcnt lgkmcnt(0)
    s_barrier""" % MHM)
    for j in range(6):
        a("ds_read_b128 v[%d:%d], v16 offset:%d" % (32 + 4 * j, 35 + 4 * j, STGO + 4096 * j))
    for j in range(6):
        a("s_waitcnt lgkmcnt(%d)" % (5 - j))
        if j == 3: pass
        a("s_add_u32 s53, s52, %d" % (4096 * j))
        a("buffer_store_dwordx4 v[%d:%d], v16, s[8:11], s53 offen sc1" % (32 + 4 * j, 35 + 4 * j))
    mega.publish(a, 3)
    srd(a, 12, P_OUT, 2097152)
    a("""s_and_b32 s50, s44, 1               ; wl
    s_lshr_b32 s51, s44, 1                ; wd
    v_lshrrev_b32 v5, 2, v3
    v_and_b32 v6, 3, v3""")
    a("""v_lshrrev_b32 v7, 3, v3
    v_lshl_add_u32 v7, v7, 1, v4          ; g + 2*(n>>3)
    s_lshl_b32 s52, s50, 5
    v_add_u32 v8, s52, v3
    v_mul_u32_u24 v8, 192, v8""")
    for ks in range(3):
        a("""v_add_u32 v9, %d, v7
        v_subrev_u32 v13, 12, v9
        v_cmp_le_u32 vcc, 12, v9
        s_nop 1
        v_cndmask_b32 v9, v9, v13, vcc
        v_lshl_add_u32 v%d, v9, 4, v8""" % (4 * ks, 10 + ks))
    a("""v_lshrrev_b32 v7, 1, v5
    v_and_b32 v8, 1, v4
    v_lshl_or_b32 v7, v8, 1, v7
    v_lshl_add_u32 v8, v4, 3, v5""")
    for dt in range(2):
        a("""s_lshl_b32 s52, s51, 1
        s_add_u32 s52, s52, %d
        v_xor_b32 v9, s52, v7
        v_lshlrev_b32 v9, 5, v9
        v_lshl_add_u32 v9, v6, 3, v9
        v_lshl_add_u32 v9, v8, 7, v9
        v_add_u32 v%d, 0x%x, v9""" % (dt, 14 + dt, SLOT[NAI]))
    for r in range(16, 32):
        a("v_mov_b32 v%d, 0" % r)
    def acc4(dt, lt): return 16 + 4 * (2 * dt + lt)
    def reads4(st):
        ks = st % 3; b = 32 + 16 * (st % 3); l = []
        for lt in range(2):
            l.append("ds_read_b128 v[%d:%d], v%d offset:%d" % (b + 4 * lt, b + 4 * lt + 3, 10 + ks, 3072 * lt))
        for dt in range(2):
            for rd in range(2):
                r = b + 8 + 4 * dt + 2 * rd
                l.append("ds_read_b64_tr_b16 v[%d:%d], v%d offset:%d" % (r, r + 1, 14 + dt, (32 * ks + 4 * rd) * 128))
        return l
    def mfmas4(st):
        b = 32 + 16 * (st % 3); l = []
        for dt in range(2):
            for lt in range(2):
                c = acc4(dt, lt); w = b + 8 + 4 * dt; h = b + 4 * lt
                l.append("v_mfma_f32_16x16x32_bf16 v[%d:%d], v[%d:%d], v[%d:%d], v[%d:%d]" % (c, c + 3, w, w + 3, h, h + 3, c, c + 3))
        return l
    mega.poll(a, 0, 3)
    a("s_barrier")
    for l in reads4(0) + reads4(1): a(l)
    NS = 3 * NCH
    for st in range(NS):
        rd = []
        a("s_waitcnt lgkmcnt(%d)" % (6 if st + 1 < NS else 0))
        mf = mfmas4(st)
        if st + 2 < NS:
            if (st + 2) % 3 == 0:
                c = (st + 2) // 3
                a(mf.pop(0))
                for regs, kind in (([10, 11, 12], "A"), ([14, 15], "B")):
                    d = SLOT[WHERE[(kind, c)]] - SLOT[WHERE[(kind, c - 1)]]
                    for r in regs:
                        if d > 0: a("v_add_u32 v%d, %d, v%d" % (r, d, r))
                        else: a("v_subrev_u32 v%d, %d, v%d" % (r, -d, r))
                a("s_barrier")
            rd = reads4(st + 2)
        while mf or rd:
            if mf: a(mf.pop(0))
            for _ in range(2):
                if rd: a(rd.pop(0))
    a("""v_lshrrev_b32 v7, 1, v5
    v_lshl_add_u32 v7, v4, 1, v7
    v_and_b32 v7, 3, v7
    v_lshl_add_u32 v8, v4, 2, v5
    s_lshl_b32 s52, s51, 5
    v_add_u32 v8, s52, v8""")
    for lt in range(2):
        a("""s_lshl_b32 s52, s50, 1
        s_add_u32 s52, s52, %d
        v_xor_b32 v9, s52, v7
        v_lshlrev_b32 v9, 5, v9
        v_lshl_add_u32 v9, v6, 3, v9
        v_lshl_add_u32 v9, v8, 7, v9
        v_add_u32 v%d, 0x%x, v9""" % (lt, 10 + lt, HOFF))
    for dt in range(2):
        for lt in range(2):
            r = 160 + 2 * (2 * dt + lt)
            a("ds_read_b64_tr_b16 v[%d:%d], v%d offset:%d" % (r, r + 1, 10 + lt, 2048 * dt))
    a("""s_lshl_b32 s52, s50, 5
    s_add_u32 s52, s52, s72
    v_add_u32 v8, s52, v3
    v_lshlrev_b32 v8, 10, v8
    v_lshl_add_u32 v8, v4, 3, v8
    s_lshl_b32 s52, s51, 5
    s_add_u32 s52, s52, s73
    s_lshl_b32 s52, s52, 1
    s_add_u32 s53, s52, 16384
    s_nop 4
    s_waitcnt lgkmcnt(0)""")
    for dt in range(2):
        for lt in range(2):
            c = acc4(dt, lt); h = 160 + 2 * (2 * dt + lt)
            for p in range(2):
                a("""v_cvt_pk_bf16_f32 v{c0}, v{c0}, v{c1}
                v_lshlrev_b32 v170, 16, v{h}
                v_and_b32 v171, s60, v{h}
                v_and_b32 v{c1}, s60, v{c0}
                v_lshlrev_b32 v{c0}, 16, v{c0}
                v_add_f32 v{c0}, v{c0}, v170
                v_add_f32 v{c1}, v{c1}, v171
                v_cvt_pk_bf16_f32 v{h}, v{c0}, v{c1}""".format(c0=c + 2 * p, c1=c + 2 * p + 1, h=h + p))
            a("buffer_store_dwordx2 v[%d:%d], v8, s[12:15], s%d offen offset:%d" % (h, h + 1, 52 + lt, 32 * dt))

def loader(a, issueB3):
    a("v_lshrrev_b32 v5, 4, v1")
    for par in range(2):
        a("""v_add_u32 v6, %d, v5
        v_lshlrev_b32 v6, 1, v6
        v_xor_b32 v6, v6, v3
        v_lshlrev_b32 v6, 4, v6
        v_lshl_add_u32 v%d, v5, 12, v6""" % (4 * par, 10 + par))
    a("""s_lshl_b32 s52, s88, 16
    s_lshl_b32 s53, s47, 1
    s_add_u32 s52, s52, s53
    s_add_u32 s52, s52, 0x%x              ; sA
    s_lshl_b32 s54, s88, 12               ; lds A off""" % MHT)
    def issueA3(c):
        sb = (c % 4) * 16384
        for p in range(4):
            a("s_add_u32 m0, s54, %d" % (sb + 1024 * p))
            a("s_add_u32 s56, s52, %d" % (c * 64 * 4096 + p * 16384))
            a("buffer_load_dwordx4 v%d, s[8:11], s56 offen sc1 lds" % (10 + (p & 1)))
    for c in range(4): issueA3(c)
    srd(a, 4, P_WD, 1376 * 1024)
    a("""v_lshrrev_b32 v6, 3, v1
    v_and_b32 v7, 7, v1""")
    a("v_lshlrev_b32 v20, 4, v1")
    for p in range(3):
        a("""s_add_u32 s61, s88, %d
        s_and_b32 s61, s61, 1
        s_lshl_b32 s61, s61, 1
        v_and_b32 v8, 1, v5
        v_or_b32 v8, s61, v8
        v_lshlrev_b32 v8, 1, v8
        v_xor_b32 v8, v8, v7
        v_lshlrev_b32 v8, 4, v8
        v_lshl_add_u32 v%d, v6, 10, v8""" % (p, 21 + p))
    a("""v_lshlrev_b32 v8, 1, v5
    v_xor_b32 v8, v8, v7
    v_lshlrev_b32 v8, 4, v8
    v_lshl_add_u32 v26, v6, 12, v8        ; h^T voffset
    s_and_b32 s61, s45, 0xf0
    s_mul_i32 s61, s61, 24576
    s_bfe_u32 s62, s45, 0x10003
    s_mul_i32 s62, s62, 12288
    s_add_u32 s61, s61, s62
    s_mul_i32 s65, s88, 3072              ; lw*3072
    s_add_u32 s61, s61, s65
    s_add_u32 s61, s61, 0x%x              ; sA4
    s_mul_i32 s62, s88, 24576             ; lw*24 rows*1024
    s_lshl_b32 s63, s73, 1
    s_add_u32 s62, s62, s63               ; sB4
    s_lshl_b32 s63, s88, 4
    s_add_u32 s63, s63, s73
    s_lshl_b32 s63, s63, 12
    s_lshl_b32 s64, s72, 1
    s_add_u32 s63, s63, s64
    s_add_u32 s63, s63, 0x%x              ; h src
    s_lshl_b32 s64, s88, 11""" % (MHM, MHT))
    waits = [12, 8, 10, 20, 20, 20, 10, 0]
    for c in range(8):
        a("s_waitcnt vmcnt(%d)" % waits[c])
        a("s_barrier")
        if c == 1:
            mega.spin(a, 2, 4)
        if c >= 1 and c + 3 < 8:
            issueA3(c + 3); issueB3(c + 3)
    a("s_barrier")
    def issueA4(c):
        sb = SLOT[WHERE[("A", c)]]
        a("s_add_u32 m0, s65, %d" % sb)
        a("s_add_u32 s57, s61, %d" % (c * 24576))
        for p in range(3):
            a("buffer_load_dwordx4 v20, s[8:11], s57 offen offset:%d sc1 lds" % (1024 * p))
    def issueB4(c):
        sb = SLOT[WHERE[("B", c)]]
        for p in range(3):
            a("s_add_u32 m0, s65, %d" % (sb + 1024 * p))
            a("s_add_u32 s57, s62, %d" % (FT0[c] * 16 * 1024 + p * 8192))
            a("buffer_load_dwordx4 v%d, s[4:7], s57 offen lds" % (21 + p))
    for c in range(4): issueB4(c)
    for p in range(2):
        a("s_add_u32 m0, s64, %d" % (HOFF + 1024 * p))
        a("s_add_u32 s57, s63, %d" % (p * 8 * 4096))
        a("buffer_load_dwordx4 v26, s[8:11], s57 offen sc1 lds")
    a("s_barrier")
    for c in range(4, NBI): issueB4(c)
    a("s_barrier")
    a("s_barrier")
    for c in range(NAI): issueA4(c)
    seq = [("A", c) for c in range(NAI)]
    for c in range(NCH):
        need = seq.index(("A", c))
        if ("B", c) in seq: need = max(need, seq.index(("B", c)))
        a("s_waitcnt vmcnt(%d)" % (3 * (len(seq) - 1 - need)))
        a("s_barrier")
        for it in ISSUES.get(c, []):
            (issueA4 if it[0] == "A" else issueB4)(it[1]); seq.append(it)
```

```python
from common import *
GRID = 256
LDS = 163840
STATS = 0
LOG2E = 0x3fb8aa3b
INV2PI = 0x3e22f983
S = 4160
UO = 4 * S
XO = UO + 5120
CHS = XO + 4096
TABB = 2 * CHS
KNAME = "sequential_preLN__ssm_conv_s4d__glu_gated_reglu__prompt_kernel"
cnt = [0]
def uniq(p):
    cnt[0] += 1
    return "%s_%d" % (p, cnt[0])

def row_reduce16(a, vs):
    for pat in ("quad_perm:[1,0,3,2]", "quad_perm:[2,3,0,1]", "row_half_mirror", "row_mirror"):
        if len(vs) < 3: a("s_nop 1")
        for v in vs:
            a("v_add_f32_dpp v%d, v%d, v%d %s row_mask:0xf bank_mask:0xf" % (v, v, v, pat))
def allreduce64(a, vs, tmps):
    row_reduce16(a, vs)
    for ins in ("v_permlane16_swap_b32", "v_permlane32_swap_b32"):
        for v, t in zip(vs, tmps): a("v_mov_b32 v%d, v%d" % (t, v))
        a("s_nop 1")
        for v, t in zip(vs, tmps): a("%s v%d, v%d" % (ins, v, t))
        for v, t in zip(vs, tmps): a("v_add_f32 v%d, v%d, v%d" % (v, v, t))

def arrive(a, phase):
    l = uniq("PUB")
    a("""s_cmp_lg_u32 s44, 0
    s_cbranch_scc1 %s""" % l)
    if phase == 1:
        a("""s_mov_b64 exec, 1
        s_and_b32 s96, s45, 1
        s_lshl_b32 s96, s96, 7
        v_mov_b32 v252, s96
        v_mov_b32 v253, 1
        buffer_atomic_add v253, v252, s[68:71], 0 offen sc1""")
    elif phase == 2:
        a("""s_mov_b64 exec, 0xff
        s_lshr_b32 s96, s46, 5
        s_lshl_b32 s96, s96, 10
        s_add_u32 s96, s96, 0x%x
        v_lshl_add_u32 v252, v1, 7, s96
        v_mov_b32 v253, 1
        buffer_atomic_add v253, v252, s[8:11], 0 offen sc1""" % (CNT + 2048))
    else:
        a("""s_mov_b64 exec, 1
        s_lshl_b32 s96, s49, 7
        s_add_u32 s96, s96, 0x%x
        v_mov_b32 v252, s96
        v_mov_b32 v253, 1
        buffer_atomic_add v253, v252, s[8:11], 0 offen sc1""" % CNT)
    a("s_mov_b64 exec, -1")
    a.label(l)

def publish(a, phase):
    a("""s_waitcnt vmcnt(0) lgkmcnt(0)
    s_barrier""")
    arrive(a, phase)

def spin(a, phase, chunk0=0):
    l = uniq("POLL"); e = uniq("POLLE")
    if phase == 1:
        a("""v_and_b32 v252, 1, v1
        v_lshlrev_b32 v252, 7, v252
        s_mov_b32 s96, 128""")
        srdn = "s[68:71]"
    elif phase == 2:
        a("""s_and_b32 s96, s2, 7
        s_lshl_b32 s96, s96, 7
        s_add_u32 s96, s96, 0x%x
        v_and_b32 v252, 3, v1
        v_lshl_add_u32 v252, v252, 10, s96
        s_mov_b32 s96, 32""" % (CNT + 2048 + 1024 * chunk0))
        srdn = "s[8:11]"
    else:
        a("""s_lshl_b32 s96, s49, 7
        s_add_u32 s96, s96, 0x%x
        v_mov_b32 v252, s96
        s_mov_b32 s96, 16""" % CNT)
        srdn = "s[8:11]"
    a("s_mov_b32 s97, 0")
    a.label(l)
    a("""buffer_load_dword v253, v252, %s, 0 offen sc1
    s_waitcnt vmcnt(0)
    v_cmp_ne_u32 vcc, s96, v253
    s_add_u32 s97, s97, 1
    s_nop 3
    s_cmp_eq_u64 vcc, 0
    s_cbranch_scc1 %s
    s_cmp_gt_u32 s97, 0x40000
    s_cbranch_scc1 %s
    s_sleep 2
    s_branch %s""" % (srdn, e, e, l))
    a.label(e)

def poll(a, wave, phase):
    e = uniq("POLLB")
    a("s_cmp_lg_u32 s44, %d" % wave)
    a("s_cbranch_scc1 %s" % e)
    spin(a, phase)
    a.label(e)
    a("s_barrier")

def gen():
    a = Asm()
    a("s_cmp_ge_u32 s2, %d" % GRID)
    a("s_cbranch_scc1 M_EXIT")
    load_ptrs(a)
    a("""v_and_b32 v1, 63, v0                ; lane
    v_lshrrev_b32 v2, 6, v0               ; wave
    v_and_b32 v3, 15, v0                  ; n
    v_readfirstlane_b32 s44, v2
    v_bfe_u32 v4, v0, 4, 2                ; g
    s_and_b32 s50, s2, 7                  ; xcd
    s_lshr_b32 s51, s2, 3                 ; local
    s_and_b32 s49, s50, 1
    s_lshl_b32 s49, s49, 3
    s_and_b32 s52, s51, 7
    s_add_u32 s49, s49, s52               ; mt
    s_lshr_b32 s52, s50, 1
    s_lshl_b32 s52, s52, 2
    s_lshr_b32 s53, s51, 3
    s_add_u32 s52, s52, s53               ; ng
    s_lshl_b32 s45, s49, 4
    s_add_u32 s45, s45, s52               ; q
    s_lshl_b32 s46, s50, 5
    s_add_u32 s46, s46, s51               ; cp
    s_lshl_b32 s47, s49, 7                ; l0
    s_mul_i32 s48, s52, 43
    s_add_u32 s48, s48, 4
    s_lshr_b32 s48, s48, 3
    s_min_u32 s48, s48, 80
    s_lshl_b32 s48, s48, 4                ; f0
    s_lshr_b32 s72, s52, 3
    s_lshl_b32 s72, s72, 6
    s_add_u32 s72, s72, s47               ; P4 l0
    s_and_b32 s73, s52, 7
    s_lshl_b32 s73, s73, 6                ; P4 d0
    s_lshr_b32 s74, s44, 2                ; ch
    s_mul_i32 s75, s74, %d                ; KB
    s_lshl_b32 s76, s46, 1
    s_add_u32 s76, s76, s74               ; channel d
    s_waitcnt lgkmcnt(0)""" % CHS)
    srd(a, 8, P_WS, MWS_LIMIT)
    srd(a, 68, P_DBG, 256)
    srd(a, 4, P_X, 2097152)
    a("""v_lshlrev_b32 v5, 4, v1
    s_lshl_b32 s50, s2, 3
    s_add_u32 s50, s50, s44               ; row
    s_lshl_b32 s51, s50, 10
    buffer_load_dwordx4 v[8:11], v5, s[4:7], s51 offen
    s_lshl_b32 s52, s76, 8
    v_lshl_add_u32 v7, v1, 2, s52
    s_lshl_b32 s52, s76, 1
    v_mov_b32 v21, s52
    global_load_dword v12, v7, s[%d:%d]
    global_load_dword v13, v7, s[%d:%d]
    global_load_dword v14, v7, s[%d:%d]
    global_load_dword v15, v7, s[%d:%d]
    global_load_ushort v16, v21, s[%d:%d]""" % (P_LAR, P_LAR + 1, P_AIM, P_AIM + 1, P_CR, P_CR + 1, P_CI, P_CI + 1, P_LDT, P_LDT + 1))
    a("s_mov_b32 s60, 0xffff0000")
    a("s_waitcnt vmcnt(5)")
    for q in range(4):
        a("v_lshlrev_b32 v%d, 16, v%d" % (24 + 2 * q, 8 + q))
        a("v_and_b32 v%d, s60, v%d" % (25 + 2 * q, 8 + q))
    a("""v_add_f32 v32, v24, v25
    v_add_f32 v33, v26, v27
    v_add_f32 v34, v28, v29
    v_add_f32 v35, v30, v31
    v_add_f32 v32, v32, v33
    v_add_f32 v34, v34, v35
    v_add_f32 v32, v32, v34""")
    allreduce64(a, [32], [33])
    a("v_mul_f32 v32, 0x3b000000, v32")
    for q in range(8):
        a("v_sub_f32 v%d, v%d, v32" % (24 + q, 24 + q))
    a("v_mul_f32 v34, v24, v24")
    a("v_mul_f32 v35, v25, v25")
    for q in range(2, 8, 2):
        a("v_fmac_f32 v34, v%d, v%d" % (24 + q, 24 + q))
        a("v_fmac_f32 v35, v%d, v%d" % (25 + q, 25 + q))
    a("v_add_f32 v34, v34, v35")
    allreduce64(a, [34], [33])
    a("""v_mul_f32 v34, 0x3b000000, v34
    v_cvt_pk_bf16_f32 v32, v32, v34
    v_and_b32 v34, s60, v32
    v_lshlrev_b32 v32, 16, v32
    v_add_f32 v34, 0x3727c5ac, v34
    v_cvt_pk_bf16_f32 v34, v34, v34
    v_lshlrev_b32 v34, 16, v34
    v_sqrt_f32 v34, v34
    s_nop 0
    v_cvt_pk_bf16_f32 v34, v34, v34
    v_lshlrev_b32 v34, 16, v34
    v_rcp_f32 v34, v34                    ; rs
    s_mul_i32 s51, s44, 2064
    v_lshl_add_u32 v6, v1, 5, s51
    s_mov_b32 s52, 0x07060302
    s_mov_b32 s53, 0x05040100""")
    for q in range(4):
        a("""v_lshlrev_b32 v24, 16, v{r}
        v_and_b32 v25, s60, v{r}
        v_sub_f32 v24, v24, v32
        v_sub_f32 v25, v25, v32
        v_cvt_pk_bf16_f32 v24, v24, v25
        v_and_b32 v25, s60, v24
        v_lshlrev_b32 v24, 16, v24
        v_mul_f32 v24, v24, v34
        v_mul_f32 v25, v25, v34
        v_cvt_pk_bf16_f32 v24, v24, v25
        v_perm_b32 v{o0}, v{r}, v24, s53
        v_perm_b32 v{o1}, v{r}, v24, s52""".format(r=8 + q, o0=36 + 2 * q, o1=37 + 2 * q))
    a("""ds_write_b128 v6, v[36:39]
    ds_write_b128 v6, v[40:43] offset:16
    v_lshrrev_b32 v6, 1, v0
    v_lshlrev_b32 v6, 2, v6
    v_and_b32 v7, 1, v0
    v_mul_u32_u24 v7, 8256, v7
    v_add_u32 v6, v6, v7
    v_mov_b32 v33, 0
    s_lshl_b32 s51, s2, 7
    s_add_u32 s51, s51, 0x%x
    s_cmp_ge_u32 s2, 80
    s_cbranch_scc1 M_NOZ
    s_cmp_lg_u32 s44, 1
    s_cbranch_scc1 M_NOZ
    s_mov_b64 exec, 1
    buffer_store_dword v33, v33, s[8:11], s51 offen sc1
    s_mov_b64 exec, -1""" % CNT)
    a.label("M_NOZ")
    a("""s_waitcnt lgkmcnt(0)
    s_barrier""")
    for j in range(2):
        for r in range(4):
            a("ds_read_b32 v%d, v6 offset:%d" % (24 + 4 * j + r, 2064 * r + 1024 * j))
    a("""v_lshlrev_b32 v6, 4, v0
    s_lshl_b32 s51, s2, 14
    s_add_u32 s52, s51, 8192
    s_waitcnt lgkmcnt(4)
    buffer_store_dwordx4 v[24:27], v6, s[8:11], s51 offen sc1
    s_waitcnt lgkmcnt(0)
    buffer_store_dwordx4 v[28:31], v6, s[8:11], s52 offen sc1""")
    a("s_load_dword s77, s[%d:%d], s46" % (P_DSK, P_DSK + 1) if False else "s_lshl_b32 s52, s46, 2\ns_load_dword s77, s[%d:%d], s52" % (P_DSK, P_DSK + 1))
    srd(a, 80, P_WG, 512 * 2752)
    srd(a, 84, P_WU, 512 * 2752)
    a("s_and_b32 s88, s44, 3               ; lw")
    a("""s_lshl_b32 s89, s48, 1                ; sB
    s_mul_i32 s90, s88, 3072""")
    a("s_mov_b32 s52, 43691")
    for p in range(3):
        a("""s_mul_i32 s53, s88, 192
        s_add_u32 s53, s53, %d
        v_add_u32 v6, s53, v1
        v_mul_lo_u32 v7, v6, s52
        v_lshrrev_b32 v7, 19, v7
        v_mul_u32_u24 v8, 12, v7
        v_sub_u32 v6, v6, v8
        v_bfe_u32 v8, v7, 2, 1
        v_lshlrev_b32 v8, 1, v8
        v_xor_b32 v6, v6, v8
        v_mul_u32_u24 v7, 2752, v7
        v_lshl_add_u32 v%d, v6, 4, v7""" % (64 * p, 244 + p))
    def issueB3(c):
        sb = 65536 + (c % 4) * 24576
        a("s_add_u32 s56, s89, %d" % (c * 64 * 2752))
        for mat in range(2):
            for p in range(3):
                a("s_add_u32 m0, s90, %d" % (sb + 12288 * mat + 1024 * p))
                a("s_nop 0")
                a("buffer_load_dwordx4 v%d, s[%d:%d], s56 offen lds" % (244 + p, 80 + 4 * mat, 83 + 4 * mat))
    a("""s_cmp_lt_u32 s44, 4
    s_cselect_b32 s92, s80, s84
    s_cselect_b32 s93, s81, s85
    s_mov_b32 s94, s82
    s_mov_b32 s95, s83
    s_mul_i32 s91, s74, 12288
    s_add_u32 s91, s91, s90""")
    pf = [(c, p) for c in range(4) for p in range(3)]
    def pf1():
        c, p = pf.pop(0)
        a("s_add_u32 m0, s91, %d" % (65536 + c * 24576 + 1024 * p))
        a("s_add_u32 s56, s89, %d" % (c * 64 * 2752))
        a("buffer_load_dwordx4 v%d, s[92:95], s56 offen lds" % (244 + p))
    import struct
    def fl(x): return "0x%08x" % struct.unpack("<I", struct.pack("<f", x))[0]
    RSV, KSV = 272, 57 * 272
    VB1, TABV, TSV, HTV = 90112, 152128, 4608, 161344
    a("""s_mov_b32 s52, 0x%x
    s_mov_b32 s53, 0x%x
    v_lshlrev_b32 v16, 16, v16
    v_lshlrev_b32 v48, 16, v12
    v_and_b32 v52, s60, v12
    v_mul_f32 v16, s52, v16
    v_mul_f32 v48, s52, v48
    v_mul_f32 v52, s52, v52
    v_exp_f32 v16, v16
    v_exp_f32 v48, v48
    v_exp_f32 v52, v52
    v_lshlrev_b32 v49, 16, v13
    v_cvt_pk_bf16_f32 v16, v16, v16
    v_cvt_pk_bf16_f32 v48, v48, v52
    v_lshlrev_b32 v16, 16, v16            ; dt
    v_and_b32 v52, s60, v48
    v_lshlrev_b32 v48, 16, v48
    v_and_b32 v53, s60, v13
    v_lshlrev_b32 v50, 16, v14
    v_and_b32 v54, s60, v14
    v_lshlrev_b32 v51, 16, v15
    v_and_b32 v55, s60, v15""" % (LOG2E, INV2PI))
    for r in range(48, 56): a("v_mul_f32 v%d, v%d, v16" % (r, r))
    for b in (48, 52):
        a("""v_mul_f32 v{0}, s52, v{0}
        v_sub_f32 v{0}, 0, v{0}
        v_mul_f32 v{1}, s53, v{1}
        v_add_f32 v{2}, v{2}, v{2}
        v_add_f32 v{3}, v{3}, v{3}""".format(b, b + 1, b + 2, b + 3))
    a("""s_and_b32 s56, s44, 3
    s_mov_b32 s54, %s
    s_mov_b32 s55, %s
    s_cmp_eq_u32 s56, 1
    s_cselect_b32 s54, 1.0, s54
    s_cmp_eq_u32 s56, 2
    s_cselect_b32 s54, 2.0, s54
    s_cmp_eq_u32 s56, 3
    s_cselect_b32 s54, %s, s54
    s_cmp_eq_u32 s56, 0
    s_cselect_b32 s55, %s, s55
    s_cselect_b32 s57, -1.0, 1.0""" % (fl(8.0), fl(128.0), fl(1024.0), fl(64.0)))
    for (dst, pp) in ((56, 54), (60, 55)):
        for m, b in ((0, 48), (2, 52)):
            a("v_mul_f32 v%d, s%d, v%d" % (dst + m, pp, b))
            a("v_mul_f32 v%d, s%d, v%d" % (dst + m + 1, pp, b + 1))
    for d in (56, 58, 60, 62):
        a("v_exp_f32 v%d, v%d" % (d, d))
        a("v_fract_f32 v%d, v%d" % (d + 1, d + 1))
    for i, d in enumerate((56, 58, 60, 62)):
        a("v_cos_f32 v%d, v%d" % (64 + i, d + 1))
        a("v_sin_f32 v%d, v%d" % (d + 1, d + 1))
    for i, d in enumerate((56, 58, 60, 62)):
        a("v_mul_f32 v%d, v%d, v%d" % (68 + i, d, d + 1))
        a("v_mul_f32 v%d, v%d, v%d" % (d, d, 64 + i))
    for i, d in enumerate((56, 58, 60, 62)):
        a("v_mul_f32 v%d, s57, v%d" % (d + 1, 68 + i))
    a("""v_and_b32 v10, 7, v3
    v_lshrrev_b32 v18, 3, v3
    v_lshl_add_u32 v10, v18, 7, v10
    v_lshrrev_b32 v18, 2, v3
    v_lshlrev_b32 v18, 7, v18
    v_and_b32 v19, 3, v3
    v_lshl_add_u32 v18, v19, 1, v18
    v_add_u32 v18, 256, v18
    v_subrev_u32 v19, 8, v3
    v_lshrrev_b32 v19, 1, v19
    v_lshlrev_b32 v19, 7, v19
    v_and_b32 v20, 1, v3
    v_lshl_add_u32 v19, v20, 2, v19
    v_add_u32 v19, 512, v19
    v_cmp_gt_u32 vcc, 8, v3
    v_lshlrev_b32 v17, 7, v3
    v_add_u32 v17, 1024, v17
    v_cndmask_b32 v11, v19, v18, vcc
    v_lshlrev_b32 v18, 2, v3
    v_add_u32 v18, 0x%x, v18
    v_lshlrev_b32 v19, 1, v10
    v_lshlrev_b32 v20, 1, v11
    v_lshlrev_b32 v21, 1, v17
    ds_write_b32 v18, v19
    ds_write_b32 v18, v20 offset:64
    ds_write_b32 v18, v21 offset:128
    s_mul_i32 s58, s74, %d                ; VB
    v_lshl_add_u32 v6, v1, 2, s58
    s_waitcnt vmcnt(0) lgkmcnt(0)
    s_barrier""" % (HTV, VB1))
    arrive(a, 1)
    def cmul(d, x, z):
        if x == z:
            a("""v_mul_f32 v72, v{xi}, v{xi}
            v_mul_f32 v73, v{xr}, v{xi}
            v_fma_f32 v{dr}, v{xr}, v{xr}, -v72
            v_add_f32 v{di}, v73, v73""".format(xr=x, xi=x + 1, dr=d, di=d + 1))
        else:
            assert d != z
            a("""v_mul_f32 v72, v{xi}, v{zi}
            v_mul_f32 v73, v{xr}, v{zi}
            v_fma_f32 v{dr}, v{xr}, v{zr}, -v72
            v_fma_f32 v{di}, v{xi}, v{zr}, v73""".format(xr=x, xi=x + 1, zr=z, zi=z + 1, dr=d, di=d + 1))
    def cmul2(d, x, z):
        cmul(d, x, z); cmul(d + 2, x + 2, z + 2)
    def emit(row, x):
        for part in range(2):
            A, B = x + part, x + 2 + part
            a("""v_cvt_pk_bf16_f32 v74, v{A}, v{B}
            v_lshlrev_b32 v76, 16, v74
            v_and_b32 v77, s60, v74
            v_sub_f32 v76, v{A}, v76
            v_sub_f32 v77, v{B}, v77
            v_cvt_pk_bf16_f32 v75, v76, v77
            ds_write_b32 v6, v74 offset:{o0}
            ds_write_b32 v6, v75 offset:{o1}""".format(A=A, B=B, o0=(2 * part) * KSV + row * RSV, o1=(2 * part + 1) * KSV + row * RSV))
    Z1, Z2, X, Y, W_ = 56, 60, 80, 84, 88
    def cquad(d):
        a("v_mov_b32 v%d, v50\nv_mov_b32 v%d, v51\nv_mov_b32 v%d, v54\nv_mov_b32 v%d, v55" % (d, d + 1, d + 2, d + 3))
    a("""s_cmp_eq_u32 s56, 1
    s_cbranch_scc1 M_KW1
    s_cmp_eq_u32 s56, 2
    s_cbranch_scc1 M_KW2
    s_cmp_eq_u32 s56, 3
    s_cbranch_scc1 M_KW3""")
    a("v_mov_b32 v80, 1.0\nv_mov_b32 v81, 0\nv_mov_b32 v82, 1.0\nv_mov_b32 v83, 0")
    emit(41, X); emit(42, Z1); emit(49, Z2)
    cmul2(X, Z1, Z1); emit(43, X); cmul2(Y, Z2, Z1); emit(50, Y)
    for j in range(3, 8):
        cmul2(X, X, Z1); emit(41 + j, X); cmul2(Y, Y, Z1); emit(49 + j - 1, Y)
    cmul2(Y, Y, Z1); emit(56, Y)
    a("s_branch M_KWE")
    a.label("M_KW1")
    cquad(X)
    for i in range(8):
        emit(i, X); cmul2(Y, X, Z2); emit(8 + i, Y)
        if i < 7: cmul2(X, X, Z1)
    a("s_branch M_KWE")
    a.label("M_KW2")
    cmul2(W_, Z2, Z2)
    cquad(Y); cmul2(X, Y, W_)
    for i in range(4):
        emit(16 + i, X); cmul2(Y, X, Z2); emit(20 + i, Y)
        if i < 3: cmul2(X, X, Z1)
    cmul2(W_, W_, W_)
    cmul2(Z1, Z1, Z1)
    cquad(Y); cmul2(X, Y, W_); cmul2(Y, X, Z1)
    for b in range(4):
        emit(24 + 2 * b, X); emit(25 + 2 * b, Y)
        if b < 3: cmul2(X, X, Z2); cmul2(Y, Y, Z2)
    a("s_branch M_KWE")
    a.label("M_KW3")
    cquad(Y); cmul2(X, Y, Z1)
    for i in range(9):
        emit(32 + i, X)
        if i < 8: cmul2(X, X, Z2)
    a.label("M_KWE")
    a("""s_lshl_b32 s52, s56, 4
    v_add_u32 v7, s52, v3
    v_mul_u32_u24 v7, %d, v7
    v_lshl_add_u32 v7, v4, 4, v7
    v_add_u32 v7, s58, v7                 ; A frag addr
    v_add_u32 v8, 41, v3
    v_mul_u32_u24 v8, %d, v8
    v_lshl_add_u32 v8, v4, 4, v8
    v_add_u32 v8, s58, v8                 ; B frag addr
    s_lshl_b32 s52, s56, 6
    v_lshl_add_u32 v9, v4, 4, s52
    v_add_u32 v9, 0x%x, v9                ; htab addr
    s_mul_i32 s53, s74, %d
    s_add_u32 s53, s53, %d                ; TAB
    v_mov_b32 v56, 0
    v_mov_b32 v57, 0
    v_mov_b32 v58, 0
    v_mov_b32 v59, 0
    s_waitcnt lgkmcnt(0)
    s_barrier
    s_cmp_eq_u32 s56, 3
    s_cbranch_scc1 M_KM3""" % (RSV, RSV, HTV, TSV, TABV))
    for st in range(4):
        for k in range(4):
            a("ds_read_b128 v[%d:%d], v7 offset:%d" % (64 + 32 * st + 4 * k, 67 + 32 * st + 4 * k, k * KSV + 64 * st))
        for k in range(4):
            a("ds_read_b128 v[%d:%d], v8 offset:%d" % (80 + 32 * st + 4 * k, 83 + 32 * st + 4 * k, k * KSV + 64 * st))
        if st == 0: a("ds_read_b128 v[60:63], v9")
    a("v_lshl_add_u32 v10, v3, 4, s53")
    a("s_add_u32 s52, s53, 4352")
    for st in range(4):
        a("s_waitcnt lgkmcnt(%d)" % min(15, 8 * (3 - st)))
        A = 64 + 32 * st; B = 80 + 32 * st
        for (ka, kb) in ((0, 0), (0, 1), (1, 0), (2, 2), (2, 3), (3, 2)):
            a("v_mfma_f32_16x16x32_bf16 v[56:59], v[%d:%d], v[%d:%d], v[56:59]" % (A + 4 * ka, A + 4 * ka + 3, B + 4 * kb, B + 4 * kb + 3))
    for r in range(4):
        a("v_add_u32 v%d, v%d, v10" % (60 + r, 60 + r))
        a("v_min_u32 v%d, s52, v%d" % (60 + r, 60 + r))
    a("""s_nop 3
    v_cvt_pk_bf16_f32 v56, v56, v57
    v_cvt_pk_bf16_f32 v58, v58, v59
    ds_write_b16 v60, v56
    ds_write_b16_d16_hi v61, v56
    ds_write_b16 v62, v58
    ds_write_b16_d16_hi v63, v58
    s_branch M_KME""")
    a.label("M_KM3")
    a("s_cmp_lg_u32 s44, 3")
    a("s_cbranch_scc1 M_KME")
    spin(a, 1)
    a.label("M_KME")
    a("""v_and_b32 v5, 255, v0
    v_lshlrev_b32 v6, 3, v5
    v_sub_u32 v6, 2047, v6""")
    for e in range(12):
        a("v_subrev_u32 v%d, %d, v6" % (24 + e, min(e, 10)))
        a("v_cvt_f32_i32 v%d, v%d" % (24 + e, 24 + e))
    for e in range(0, 12, 2):
        a("v_cvt_pk_bf16_f32 v%d, v%d, v%d" % (40 + e // 2, 24 + e, 25 + e))
    for e in range(11):
        if e % 2 == 0: a("v_lshlrev_b32 v%d, 16, v%d" % (24 + e, 40 + e // 2))
        else: a("v_and_b32 v%d, 0xffff0000, v%d" % (24 + e, 40 + e // 2))
    for e in range(11):
        a("v_cvt_u32_f32 v%d, v%d" % (24 + e, 24 + e))
        a("v_lshl_add_u32 v%d, v%d, 1, s53" % (24 + e, 24 + e))
    a("""v_lshl_add_u32 v7, v5, 4, s75         ; KB + t*16
    v_lshrrev_b32 v8, 2, v0
    v_and_b32 v9, 3, v0
    v_lshlrev_b32 v10, 14, v8
    v_lshl_add_u32 v10, v9, 4, v10
    s_lshl_b32 s52, s46, 6
    s_add_u32 s54, s52, 0x200000
    s_waitcnt lgkmcnt(0)
    s_barrier
    buffer_load_dwordx4 v[96:99], v10, s[8:11], s52 offen sc1
    buffer_load_dwordx4 v[100:103], v10, s[8:11], s54 offen sc1""")
    for e in range(11):
        a("ds_read_u16 v%d, v%d" % (44 + e, 24 + e))
    a("""v_lshlrev_b32 v8, 4, v8
    v_and_b32 v10, 1, v9
    v_lshl_add_u32 v8, v10, 3, v8
    v_lshrrev_b32 v9, 1, v9
    v_mul_u32_u24 v9, %d, v9
    v_add_u32 v11, v8, v9                 ; ux lds addr
    v_mov_b32 v64, 0
    v_mov_b32 v65, 0
    v_mov_b32 v66, 0
    v_mov_b32 v67, 0
    v_cmp_eq_u32 vcc, 255, v5
    v_lshl_add_u32 v8, v1, 4, s75
    v_lshrrev_b32 v9, 2, v1
    v_mul_u32_u24 v9, %d, v9
    v_and_b32 v10, 3, v1
    v_lshl_add_u32 v9, v10, 4, v9
    v_add_u32 v9, s75, v9
    s_waitcnt lgkmcnt(0)
    v_cndmask_b32 v52, v52, v64, vcc
    v_cndmask_b32 v53, v53, v64, vcc
    v_cndmask_b32 v54, v54, v64, vcc""" % (CHS, S))
    for c in range(4):
        for j in range(4):
            a("v_lshl_or_b32 v%d, v%d, 16, v%d" % (68 + 4 * c + j, 45 + c + 2 * j, 44 + c + 2 * j))
        a("ds_write_b128 v7, v[%d:%d] offset:%d" % (68 + 4 * c, 71 + 4 * c, c * S))
    a("""ds_write_b128 v8, v[64:67] offset:%d
    v_cmp_gt_u32 vcc, 16, v1
    s_and_saveexec_b64 s[54:55], vcc
    ds_write_b128 v9, v[64:67] offset:4096
    s_mov_b64 exec, s[54:55]
    s_mov_b32 s52, 0x07060302
    s_mov_b32 s53, 0x05040100""" % UO)
    for j in range(2):
        b = 96 + 4 * j
        a("""s_waitcnt vmcnt({w})
        v_perm_b32 v16, v{b1}, v{b0}, s53
        v_perm_b32 v17, v{b3}, v{b2}, s53
        v_perm_b32 v18, v{b1}, v{b0}, s52
        v_perm_b32 v19, v{b3}, v{b2}, s52
        ds_write_b64 v11, v[16:17] offset:{ou}
        ds_write_b64 v11, v[18:19] offset:{ox}""".format(w=1 - j, b0=b, b1=b + 1, b2=b + 2, b3=b + 3, ou=UO + 1024 + 2048 * j, ox=XO + 2048 * j))
    a("""s_bfe_u32 s50, s44, 0x10001           ; mt
    s_and_b32 s51, s44, 1                 ; hf
    v_and_b32 v14, 3, v3
    v_sub_u32 v14, 3, v14
    v_mul_u32_u24 v14, %d, v14
    v_lshrrev_b32 v15, 2, v3
    v_lshlrev_b32 v15, 3, v15
    v_sub_u32 v14, v14, v15
    v_lshl_add_u32 v14, v4, 4, v14
    s_lshl_b32 s52, s51, 9
    s_sub_u32 s53, s75, s52
    s_lshl_b32 s54, s50, 5
    s_sub_u32 s54, s53, s54
    s_add_u32 s54, s54, %d
    v_add_u32 v14, s54, v14               ; vA
    v_lshlrev_b32 v15, 6, v3
    v_lshl_add_u32 v15, v4, 4, v15
    s_add_u32 s53, s53, %d
    v_add_u32 v15, s53, v15               ; vB""" % (S, 4088 - 448 - 3072, UO + 1024 - 448))
    for r in range(16):
        a("v_mov_b32 v%d, 0" % (16 + r))
    a("""s_waitcnt lgkmcnt(0)
    s_barrier""")
    FB = [32, 64]
    def cloads(t, fb):
        l = []
        for q in range(4):
            l.append("ds_read_b128 v[%d:%d], v15 offset:%d" % (fb + 4 * q, fb + 4 * q + 3, 64 * (7 - t) + 1024 * q))
        for j in range(4):
            r = fb + 16 + 4 * j
            off = 64 * (7 - t) + 1024 * (3 - j)
            l.append("ds_read_b64 v[%d:%d], v14 offset:%d" % (r, r + 1, off))
            l.append("ds_read_b64 v[%d:%d], v14 offset:%d" % (r + 2, r + 3, off + 8))
        return l
    for l in cloads(0, FB[0]): a(l)
    for t in range(8):
        fb = FB[t & 1]
        a("s_waitcnt lgkmcnt(0)")
        mf = []
        for j in range(4):
            for nt in range(j, 4):
                r = fb + 16 + 4 * j; b = fb + 4 * (nt - j); c = 16 + 4 * nt
                mf.append("v_mfma_f32_16x16x32_bf16 v[%d:%d], v[%d:%d], v[%d:%d], v[%d:%d]" % (c, c + 3, r, r + 3, b, b + 3, c, c + 3))
        ld = cloads(t + 1, FB[(t + 1) & 1]) if t < 7 else []
        for k in range(12):
            if k < len(ld): a(ld[k])
            if k < 10: a(mf[k])
            if k == 4 and t < 4: pf1()
        pf1()
    a("""s_and_b32 s52, s44, 3
    s_lshl_b32 s53, s52, 11
    s_add_u32 s53, s53, s75
    s_xor_b32 s52, s52, 1
    s_lshl_b32 s52, s52, 11
    s_add_u32 s52, s52, s75
    v_lshl_add_u32 v7, v1, 4, s53         ; write
    v_lshl_add_u32 v8, v1, 4, s52         ; read
    v_lshlrev_b32 v9, 6, v3
    v_lshl_add_u32 v9, v4, 3, v9
    s_lshl_b32 s52, s51, 11
    s_lshl_b32 s53, s50, 5
    s_add_u32 s52, s52, s53
    s_add_u32 s52, s52, s75
    v_add_u32 v9, s52, v9
    s_lshl_b32 s52, s74, 4
    s_lshr_b32 s77, s77, s52
    s_lshl_b32 s77, s77, 16               ; D_skip
    s_barrier
    s_cmp_eq_u32 s51, 0
    s_cbranch_scc1 M_RW0
    ds_write_b128 v7, v[16:19]
    ds_write_b128 v7, v[20:23] offset:1024""")
    for r in range(8): a("v_mov_b32 v%d, v%d" % (16 + r, 24 + r))
    a("s_branch M_RJ")
    a.label("M_RW0")
    a("""ds_write_b128 v7, v[24:27]
    ds_write_b128 v7, v[28:31] offset:1024""")
    a.label("M_RJ")
    for t in range(2):
        a("ds_read_b64 v[%d:%d], v9 offset:%d" % (40 + 2 * t, 41 + 2 * t, UO + 1024 + 1024 * t))
        a("ds_read_b64 v[%d:%d], v9 offset:%d" % (44 + 2 * t, 45 + 2 * t, XO + 1024 * t))
    a("""s_waitcnt lgkmcnt(0)
    s_barrier
    ds_read_b128 v[32:35], v8
    ds_read_b128 v[36:39], v8 offset:1024
    s_waitcnt lgkmcnt(0)""")
    for r in range(8): a("v_add_f32 v%d, v%d, v%d" % (16 + r, 16 + r, 32 + r))
    for t in range(2):
        for p in range(2):
            y0, y1 = 16 + 4 * t + 2 * p, 17 + 4 * t + 2 * p
            u = 40 + 2 * t + p; x = 44 + 2 * t + p
            a("""v_cvt_pk_bf16_f32 v{y0}, v{y0}, v{y1}
            v_lshlrev_b32 v50, 16, v{u}
            v_and_b32 v51, s60, v{u}
            v_mul_f32 v50, s77, v50
            v_mul_f32 v51, s77, v51
            v_cvt_pk_bf16_f32 v50, v50, v51
            v_and_b32 v{y1}, s60, v{y0}
            v_lshlrev_b32 v{y0}, 16, v{y0}
            v_and_b32 v51, s60, v50
            v_lshlrev_b32 v50, 16, v50
            v_add_f32 v{y0}, v{y0}, v50
            v_add_f32 v{y1}, v{y1}, v51
            v_cvt_pk_bf16_f32 v{y0}, v{y0}, v{y1}
            v_lshlrev_b32 v50, 16, v{x}
            v_and_b32 v51, s60, v{x}
            v_and_b32 v{y1}, s60, v{y0}
            v_lshlrev_b32 v{y0}, 16, v{y0}
            v_add_f32 v{y0}, v{y0}, v50
            v_add_f32 v{y1}, v{y1}, v51
            v_cvt_pk_bf16_f32 v{o}, v{y0}, v{y1}""".format(y0=y0, y1=y1, u=u, x=x, o=52 + 2 * t + p))
        a("ds_write_b64 v9, v[%d:%d] offset:%d" % (52 + 2 * t, 53 + 2 * t, XO + 1024 * t))
    a("""v_and_b32 v5, 255, v0
    v_lshl_add_u32 v5, v5, 4, s75
    v_lshlrev_b32 v6, 4, v0
    s_lshl_b32 s52, s46, 13
    s_add_u32 s52, s52, 0x%x
    s_waitcnt lgkmcnt(0)
    s_barrier
    ds_read_b128 v[8:11], v5 offset:%d
    s_waitcnt lgkmcnt(0)
    buffer_store_dwordx4 v[8:11], v6, s[8:11], s52 offen sc1""" % (MHT, XO))
    publish(a, 2)
    srd(a, 4, P_WD, 1376 * 1024)
    a("""s_lshr_b32 s52, s2, 3
    s_mul_i32 s52, s52, 43
    s_mul_i32 s53, s44, 6
    s_add_u32 s52, s52, s53
    s_sub_u32 s52, s52, 5
    s_lshl_b32 s52, s52, 10
    s_and_b32 s53, s73, 0x100
    s_lshl_b32 s53, s53, 1
    s_add_u32 s52, s52, s53
    v_lshrrev_b32 v5, 5, v1
    v_and_b32 v6, 31, v1
    v_lshlrev_b32 v6, 4, v6
    v_lshl_add_u32 v5, v5, 10, v6
    s_cmp_eq_u32 s44, 0
    s_cbranch_scc1 M_NOWARM
    buffer_load_dwordx4 v[172:175], v5, s[4:7], s52 offen
    buffer_load_dwordx4 v[176:179], v5, s[4:7], s52 offen offset:2048
    s_add_u32 s52, s52, 4096
    buffer_load_dwordx4 v[180:183], v5, s[4:7], s52 offen""")
    a.label("M_NOWARM")
    poll(a, 0, 2)
    a("s_cmp_ge_u32 s44, 4")
    a("s_cbranch_scc1 M_LOADER")
    import mega34
    mega34.consumer(a)
    a("s_endpgm")
    a.label("M_LOADER")
    mega34.loader(a, issueB3)
    a.label("M_EXIT")
    a("s_endpgm")
    return kernel_header(KNAME) + a.text() + kernel_desc(KNAME, 256, 100)
```

```python
from common import *
GRID = 256
LDS = 163840
STATS = 0
LOG2E = 0x3fb8aa3b
INV2PI = 0x3e22f983
S = 4160
UO = 4 * S
XO = UO + 5120
CHS = XO + 4096
TABB = 2 * CHS
KNAME = "sequential_preLN__ssm_conv_s4d__glu_gated_reglu__prompt_kernel"
cnt = [0]
CODE_BYTES = 0x8A00
def uniq(p):
    cnt[0] += 1
    return "%s_%d" % (p, cnt[0])

def row_reduce16(a, vs):
    for pat in ("quad_perm:[1,0,3,2]", "quad_perm:[2,3,0,1]", "row_half_mirror", "row_mirror"):
        if len(vs) < 3: a("s_nop 1")
        for v in vs:
            a("v_add_f32_dpp v%d, v%d, v%d %s row_mask:0xf bank_mask:0xf" % (v, v, v, pat))
def allreduce64(a, vs, tmps):
    row_reduce16(a, vs)
    for ins in ("v_permlane16_swap_b32", "v_permlane32_swap_b32"):
        for v, t in zip(vs, tmps): a("v_mov_b32 v%d, v%d" % (t, v))
        a("s_nop 1")
        for v, t in zip(vs, tmps): a("%s v%d, v%d" % (ins, v, t))
        for v, t in zip(vs, tmps): a("v_add_f32 v%d, v%d, v%d" % (v, v, t))

def arrive(a, phase):
    l = uniq("PUB")
    a("""s_cmp_lg_u32 s44, 0
    s_cbranch_scc1 %s""" % l)
    if phase == 1:
        a("""s_mov_b64 exec, 1
        s_and_b32 s96, s45, 1
        s_lshl_b32 s96, s96, 7
        v_mov_b32 v252, s96
        v_mov_b32 v253, 1
        buffer_atomic_add v253, v252, s[68:71], 0 offen sc1""")
    elif phase == 2:
        a("""s_mov_b64 exec, 0xff
        s_lshr_b32 s96, s46, 5
        s_lshl_b32 s96, s96, 10
        s_add_u32 s96, s96, 0x%x
        v_lshl_add_u32 v252, v1, 7, s96
        v_mov_b32 v253, 1
        buffer_atomic_add v253, v252, s[8:11], 0 offen sc1""" % (CNT + 2048))
    else:
        a("""s_mov_b64 exec, 1
        s_lshl_b32 s96, s49, 7
        s_add_u32 s96, s96, 0x%x
        v_mov_b32 v252, s96
        v_mov_b32 v253, 1
        buffer_atomic_add v253, v252, s[8:11], 0 offen sc1""" % CNT)
    a("s_mov_b64 exec, -1")
    a.label(l)

def publish(a, phase):
    a("""s_waitcnt vmcnt(0) lgkmcnt(0)
    s_barrier""")
    arrive(a, phase)

def spin(a, phase, chunk0=0):
    l = uniq("POLL"); e = uniq("POLLE")
    if phase == 1:
        a("""v_and_b32 v252, 1, v1
        v_lshlrev_b32 v252, 7, v252
        s_mov_b32 s96, 128""")
        srdn = "s[68:71]"
    elif phase == 2:
        a("""s_and_b32 s96, s2, 7
        s_lshl_b32 s96, s96, 7
        s_add_u32 s96, s96, 0x%x
        v_and_b32 v252, 3, v1
        v_lshl_add_u32 v252, v252, 10, s96
        s_mov_b32 s96, 32""" % (CNT + 2048 + 1024 * chunk0))
        srdn = "s[8:11]"
    else:
        a("""s_lshl_b32 s96, s49, 7
        s_add_u32 s96, s96, 0x%x
        v_mov_b32 v252, s96
        s_mov_b32 s96, 16""" % CNT)
        srdn = "s[8:11]"
    a("s_mov_b32 s97, 0")
    a.label(l)
    a("""buffer_load_dword v253, v252, %s, 0 offen sc1
    s_waitcnt vmcnt(0)
    v_cmp_ne_u32 vcc, s96, v253
    s_add_u32 s97, s97, 1
    s_nop 3
    s_cmp_eq_u64 vcc, 0
    s_cbranch_scc1 %s
    s_cmp_gt_u32 s97, 0x200000
    s_cbranch_scc1 %s
    s_sleep 1
    s_branch %s""" % (srdn, e, e, l))
    a.label(e)

def poll(a, wave, phase):
    e = uniq("POLLB")
    a("s_cmp_lg_u32 s44, %d" % wave)
    a("s_cbranch_scc1 %s" % e)
    spin(a, phase)
    a.label(e)
    a("s_barrier")

def gen():
    a = Asm()
    a("s_cmp_ge_u32 s2, %d" % GRID)
    a("s_cbranch_scc1 M_EXIT")
    load_ptrs(a)
    a("""s_getpc_b64 s[66:67]
    s_lshr_b32 s96, s2, 3
    s_lshl_b32 s96, s96, 11
    v_lshlrev_b32 v250, 2, v0
    v_add_u32 v250, s96, v250
    v_min_u32 v250, CODE_LIMIT, v250""")
    a("""v_and_b32 v1, 63, v0                ; lane
    v_lshrrev_b32 v2, 6, v0               ; wave
    v_and_b32 v3, 15, v0                  ; n
    v_readfirstlane_b32 s44, v2
    v_bfe_u32 v4, v0, 4, 2                ; g
    s_and_b32 s50, s2, 7                  ; xcd
    s_lshr_b32 s51, s2, 3                 ; local
    s_and_b32 s49, s50, 1
    s_lshl_b32 s49, s49, 3
    s_and_b32 s52, s51, 7
    s_add_u32 s49, s49, s52               ; mt
    s_lshr_b32 s52, s50, 1
    s_lshl_b32 s52, s52, 2
    s_lshr_b32 s53, s51, 3
    s_add_u32 s52, s52, s53               ; ng
    s_lshl_b32 s45, s49, 4
    s_add_u32 s45, s45, s52               ; q
    s_lshl_b32 s46, s50, 5
    s_add_u32 s46, s46, s51               ; cp
    s_lshl_b32 s47, s49, 7                ; l0
    s_mul_i32 s48, s52, 43
    s_add_u32 s48, s48, 4
    s_lshr_b32 s48, s48, 3
    s_min_u32 s48, s48, 80
    s_lshl_b32 s48, s48, 4                ; f0
    s_lshr_b32 s72, s52, 3
    s_lshl_b32 s72, s72, 6
    s_add_u32 s72, s72, s47               ; P4 l0
    s_and_b32 s73, s52, 7
    s_lshl_b32 s73, s73, 6                ; P4 d0
    s_lshr_b32 s74, s44, 2                ; ch
    s_mul_i32 s75, s74, %d                ; KB
    s_lshl_b32 s76, s46, 1
    s_add_u32 s76, s76, s74               ; channel d
    s_waitcnt lgkmcnt(0)""" % CHS)
    srd(a, 8, P_WS, MWS_LIMIT)
    srd(a, 68, P_DBG, 256)
    srd(a, 4, P_X, 2097152)
    a("""v_lshlrev_b32 v5, 4, v1
    s_lshl_b32 s50, s2, 3
    s_add_u32 s50, s50, s44               ; row
    s_lshl_b32 s51, s50, 10
    buffer_load_dwordx4 v[8:11], v5, s[4:7], s51 offen
    s_lshl_b32 s52, s76, 8
    v_lshl_add_u32 v7, v1, 2, s52
    s_lshl_b32 s52, s76, 1
    v_mov_b32 v21, s52
    global_load_dword v12, v7, s[%d:%d]
    global_load_dword v13, v7, s[%d:%d]
    global_load_dword v14, v7, s[%d:%d]
    global_load_dword v15, v7, s[%d:%d]
    global_load_ushort v16, v21, s[%d:%d]""" % (P_LAR, P_LAR + 1, P_AIM, P_AIM + 1, P_CR, P_CR + 1, P_CI, P_CI + 1, P_LDT, P_LDT + 1))
    a("global_load_dword v251, v250, s[66:67]")
    a("s_mov_b32 s60, 0xffff0000")
    a("s_waitcnt vmcnt(1)")
    for q in range(4):
        a("v_lshlrev_b32 v%d, 16, v%d" % (24 + 2 * q, 8 + q))
        a("v_and_b32 v%d, s60, v%d" % (25 + 2 * q, 8 + q))
    a("""v_add_f32 v32, v24, v25
    v_add_f32 v33, v26, v27
    v_add_f32 v34, v28, v29
    v_add_f32 v35, v30, v31
    v_add_f32 v32, v32, v33
    v_add_f32 v34, v34, v35
    v_add_f32 v32, v32, v34""")
    allreduce64(a, [32], [33])
    a("v_mul_f32 v32, 0x3b000000, v32")
    for q in range(8):
        a("v_sub_f32 v%d, v%d, v32" % (24 + q, 24 + q))
    a("v_mul_f32 v34, v24, v24")
    a("v_mul_f32 v35, v25, v25")
    for q in range(2, 8, 2):
        a("v_fmac_f32 v34, v%d, v%d" % (24 + q, 24 + q))
        a("v_fmac_f32 v35, v%d, v%d" % (25 + q, 25 + q))
    a("v_add_f32 v34, v34, v35")
    allreduce64(a, [34], [33])
    a("""v_mul_f32 v34, 0x3b000000, v34
    v_cvt_pk_bf16_f32 v32, v32, v34
    v_and_b32 v34, s60, v32
    v_lshlrev_b32 v32, 16, v32
    v_add_f32 v34, 0x3727c5ac, v34
    v_cvt_pk_bf16_f32 v34, v34, v34
    v_lshlrev_b32 v34, 16, v34
    v_sqrt_f32 v34, v34
    s_nop 0
    v_cvt_pk_bf16_f32 v34, v34, v34
    v_lshlrev_b32 v34, 16, v34
    v_rcp_f32 v34, v34                    ; rs
    s_mul_i32 s51, s44, 2064
    v_lshl_add_u32 v6, v1, 5, s51
    s_mov_b32 s52, 0x07060302
    s_mov_b32 s53, 0x05040100""")
    for q in range(4):
        a("""v_lshlrev_b32 v24, 16, v{r}
        v_and_b32 v25, s60, v{r}
        v_sub_f32 v24, v24, v32
        v_sub_f32 v25, v25, v32
        v_cvt_pk_bf16_f32 v24, v24, v25
        v_and_b32 v25, s60, v24
        v_lshlrev_b32 v24, 16, v24
        v_mul_f32 v24, v24, v34
        v_mul_f32 v25, v25, v34
        v_cvt_pk_bf16_f32 v24, v24, v25
        v_perm_b32 v{o0}, v{r}, v24, s53
        v_perm_b32 v{o1}, v{r}, v24, s52""".format(r=8 + q, o0=36 + 2 * q, o1=37 + 2 * q))
    a("""ds_write_b128 v6, v[36:39]
    ds_write_b128 v6, v[40:43] offset:16
    v_lshrrev_b32 v6, 1, v0
    v_lshlrev_b32 v6, 2, v6
    v_and_b32 v7, 1, v0
    v_mul_u32_u24 v7, 8256, v7
    v_add_u32 v6, v6, v7
    v_mov_b32 v33, 0
    s_lshl_b32 s51, s2, 7
    s_add_u32 s51, s51, 0x%x
    s_cmp_ge_u32 s2, 80
    s_cbranch_scc1 M_NOZ
    s_cmp_lg_u32 s44, 1
    s_cbranch_scc1 M_NOZ
    s_mov_b64 exec, 1
    buffer_store_dword v33, v33, s[8:11], s51 offen sc1
    s_mov_b64 exec, -1""" % CNT)
    a.label("M_NOZ")
    a("""s_waitcnt lgkmcnt(0)
    s_barrier""")
    for j in range(2):
        for r in range(4):
            a("ds_read_b32 v%d, v6 offset:%d" % (24 + 4 * j + r, 2064 * r + 1024 * j))
    a("""v_lshlrev_b32 v6, 4, v0
    s_lshl_b32 s51, s2, 14
    s_add_u32 s52, s51, 8192
    s_waitcnt lgkmcnt(4)
    buffer_store_dwordx4 v[24:27], v6, s[8:11], s51 offen sc1
    s_waitcnt lgkmcnt(0)
    buffer_store_dwordx4 v[28:31], v6, s[8:11], s52 offen sc1""")
    a("s_load_dword s77, s[%d:%d], s46" % (P_DSK, P_DSK + 1) if False else "s_lshl_b32 s52, s46, 2\ns_load_dword s77, s[%d:%d], s52" % (P_DSK, P_DSK + 1))
    srd(a, 80, P_WG, 512 * 2752)
    srd(a, 84, P_WU, 512 * 2752)
    a("s_and_b32 s88, s44, 3               ; lw")
    a("""s_lshl_b32 s89, s48, 1                ; sB
    s_mul_i32 s90, s88, 3072""")
    a("s_mov_b32 s52, 43691")
    for p in range(3):
        a("""s_mul_i32 s53, s88, 192
        s_add_u32 s53, s53, %d
        v_add_u32 v6, s53, v1
        v_mul_lo_u32 v7, v6, s52
        v_lshrrev_b32 v7, 19, v7
        v_mul_u32_u24 v8, 12, v7
        v_sub_u32 v6, v6, v8
        v_bfe_u32 v8, v7, 2, 1
        v_lshlrev_b32 v8, 1, v8
        v_xor_b32 v6, v6, v8
        v_mul_u32_u24 v7, 2752, v7
        v_lshl_add_u32 v%d, v6, 4, v7""" % (64 * p, 244 + p))
    def issueB3(c):
        sb = 65536 + (c % 4) * 24576
        a("s_add_u32 s56, s89, %d" % (c * 64 * 2752))
        for mat in range(2):
            for p in range(3):
                a("s_add_u32 m0, s90, %d" % (sb + 12288 * mat + 1024 * p))
                a("s_nop 0")
                a("buffer_load_dwordx4 v%d, s[%d:%d], s56 offen lds" % (244 + p, 80 + 4 * mat, 83 + 4 * mat))
    a("""s_cmp_lt_u32 s44, 4
    s_cselect_b32 s92, s80, s84
    s_cselect_b32 s93, s81, s85
    s_mov_b32 s94, s82
    s_mov_b32 s95, s83
    s_mul_i32 s91, s74, 12288
    s_add_u32 s91, s91, s90""")
    pf = [(c, p) for c in range(4) for p in range(3)]
    def pf1():
        c, p = pf.pop(0)
        a("s_add_u32 m0, s91, %d" % (65536 + c * 24576 + 1024 * p))
        a("s_add_u32 s56, s89, %d" % (c * 64 * 2752))
        a("buffer_load_dwordx4 v%d, s[92:95], s56 offen lds" % (244 + p))
    import struct
    def fl(x): return "0x%08x" % struct.unpack("<I", struct.pack("<f", x))[0]
    RSV, KSV = 272, 57 * 272
    VB1, TABV, TSV, HTV = 90112, 152128, 4608, 161344
    a("""s_mov_b32 s52, 0x%x
    s_mov_b32 s53, 0x%x
    v_lshlrev_b32 v16, 16, v16
    v_lshlrev_b32 v48, 16, v12
    v_and_b32 v52, s60, v12
    v_mul_f32 v16, s52, v16
    v_mul_f32 v48, s52, v48
    v_mul_f32 v52, s52, v52
    v_exp_f32 v16, v16
    v_exp_f32 v48, v48
    v_exp_f32 v52, v52
    v_lshlrev_b32 v49, 16, v13
    v_cvt_pk_bf16_f32 v16, v16, v16
    v_cvt_pk_bf16_f32 v48, v48, v52
    v_lshlrev_b32 v16, 16, v16            ; dt
    v_and_b32 v52, s60, v48
    v_lshlrev_b32 v48, 16, v48
    v_and_b32 v53, s60, v13
    v_lshlrev_b32 v50, 16, v14
    v_and_b32 v54, s60, v14
    v_lshlrev_b32 v51, 16, v15
    v_and_b32 v55, s60, v15""" % (LOG2E, INV2PI))
    for r in range(48, 56): a("v_mul_f32 v%d, v%d, v16" % (r, r))
    for b in (48, 52):
        a("""v_mul_f32 v{0}, s52, v{0}
        v_sub_f32 v{0}, 0, v{0}
        v_mul_f32 v{1}, s53, v{1}
        v_add_f32 v{2}, v{2}, v{2}
        v_add_f32 v{3}, v{3}, v{3}""".format(b, b + 1, b + 2, b + 3))
    a("""s_and_b32 s56, s44, 3
    s_mov_b32 s54, %s
    s_mov_b32 s55, %s
    s_cmp_eq_u32 s56, 1
    s_cselect_b32 s54, 1.0, s54
    s_cmp_eq_u32 s56, 2
    s_cselect_b32 s54, 2.0, s54
    s_cmp_eq_u32 s56, 3
    s_cselect_b32 s54, %s, s54
    s_cmp_eq_u32 s56, 0
    s_cselect_b32 s55, %s, s55
    s_cselect_b32 s57, -1.0, 1.0""" % (fl(8.0), fl(128.0), fl(1024.0), fl(64.0)))
    for (dst, pp) in ((56, 54), (60, 55)):
        for m, b in ((0, 48), (2, 52)):
            a("v_mul_f32 v%d, s%d, v%d" % (dst + m, pp, b))
            a("v_mul_f32 v%d, s%d, v%d" % (dst + m + 1, pp, b + 1))
    for d in (56, 58, 60, 62):
        a("v_exp_f32 v%d, v%d" % (d, d))
        a("v_fract_f32 v%d, v%d" % (d + 1, d + 1))
    for i, d in enumerate((56, 58, 60, 62)):
        a("v_cos_f32 v%d, v%d" % (64 + i, d + 1))
        a("v_sin_f32 v%d, v%d" % (d + 1, d + 1))
    for i, d in enumerate((56, 58, 60, 62)):
        a("v_mul_f32 v%d, v%d, v%d" % (68 + i, d, d + 1))
        a("v_mul_f32 v%d, v%d, v%d" % (d, d, 64 + i))
    for i, d in enumerate((56, 58, 60, 62)):
        a("v_mul_f32 v%d, s57, v%d" % (d + 1, 68 + i))
    a("""v_and_b32 v10, 7, v3
    v_lshrrev_b32 v18, 3, v3
    v_lshl_add_u32 v10, v18, 7, v10
    v_lshrrev_b32 v18, 2, v3
    v_lshlrev_b32 v18, 7, v18
    v_and_b32 v19, 3, v3
    v_lshl_add_u32 v18, v19, 1, v18
    v_add_u32 v18, 256, v18
    v_subrev_u32 v19, 8, v3
    v_lshrrev_b32 v19, 1, v19
    v_lshlrev_b32 v19, 7, v19
    v_and_b32 v20, 1, v3
    v_lshl_add_u32 v19, v20, 2, v19
    v_add_u32 v19, 512, v19
    v_cmp_gt_u32 vcc, 8, v3
    v_lshlrev_b32 v17, 7, v3
    v_add_u32 v17, 1024, v17
    v_cndmask_b32 v11, v19, v18, vcc
    v_lshlrev_b32 v18, 2, v3
    v_add_u32 v18, 0x%x, v18
    v_lshlrev_b32 v19, 1, v10
    v_lshlrev_b32 v20, 1, v11
    v_lshlrev_b32 v21, 1, v17
    ds_write_b32 v18, v19
    ds_write_b32 v18, v20 offset:64
    ds_write_b32 v18, v21 offset:128
    s_mul_i32 s58, s74, %d                ; VB
    v_lshl_add_u32 v6, v1, 2, s58
    s_waitcnt vmcnt(0) lgkmcnt(0)
    s_barrier""" % (HTV, VB1))
    arrive(a, 1)
    def cmul(d, x, z):
        if x == z:
            a("""v_mul_f32 v72, v{xi}, v{xi}
            v_mul_f32 v73, v{xr}, v{xi}
            v_fma_f32 v{dr}, v{xr}, v{xr}, -v72
            v_add_f32 v{di}, v73, v73""".format(xr=x, xi=x + 1, dr=d, di=d + 1))
        else:
            assert d != z
            a("""v_mul_f32 v72, v{xi}, v{zi}
            v_mul_f32 v73, v{xr}, v{zi}
            v_fma_f32 v{dr}, v{xr}, v{zr}, -v72
            v_fma_f32 v{di}, v{xi}, v{zr}, v73""".format(xr=x, xi=x + 1, zr=z, zi=z + 1, dr=d, di=d + 1))
    def cmul2(d, x, z):
        cmul(d, x, z); cmul(d + 2, x + 2, z + 2)
    def emit(row, x):
        for part in range(2):
            A, B = x + part, x + 2 + part
            a("""v_cvt_pk_bf16_f32 v74, v{A}, v{B}
            v_lshlrev_b32 v76, 16, v74
            v_and_b32 v77, s60, v74
            v_sub_f32 v76, v{A}, v76
            v_sub_f32 v77, v{B}, v77
            v_cvt_pk_bf16_f32 v75, v76, v77
            ds_write_b32 v6, v74 offset:{o0}
            ds_write_b32 v6, v75 offset:{o1}""".format(A=A, B=B, o0=(2 * part) * KSV + row * RSV, o1=(2 * part + 1) * KSV + row * RSV))
    Z1, Z2, X, Y, W_ = 56, 60, 80, 84, 88
    def cquad(d):
        a("v_mov_b32 v%d, v50\nv_mov_b32 v%d, v51\nv_mov_b32 v%d, v54\nv_mov_b32 v%d, v55" % (d, d + 1, d + 2, d + 3))
    a("""s_cmp_eq_u32 s56, 1
    s_cbranch_scc1 M_KW1
    s_cmp_eq_u32 s56, 2
    s_cbranch_scc1 M_KW2
    s_cmp_eq_u32 s56, 3
    s_cbranch_scc1 M_KW3""")
    a("v_mov_b32 v80, 1.0\nv_mov_b32 v81, 0\nv_mov_b32 v82, 1.0\nv_mov_b32 v83, 0")
    emit(41, X); emit(42, Z1); emit(49, Z2)
    cmul2(X, Z1, Z1); emit(43, X); cmul2(Y, Z2, Z1); emit(50, Y)
    for j in range(3, 8):
        cmul2(X, X, Z1); emit(41 + j, X); cmul2(Y, Y, Z1); emit(49 + j - 1, Y)
    cmul2(Y, Y, Z1); emit(56, Y)
    a("s_branch M_KWE")
    a.label("M_KW1")
    cquad(X)
    for i in range(8):
        emit(i, X); cmul2(Y, X, Z2); emit(8 + i, Y)
        if i < 7: cmul2(X, X, Z1)
    a("s_branch M_KWE")
    a.label("M_KW2")
    cmul2(W_, Z2, Z2)
    cquad(Y); cmul2(X, Y, W_)
    for i in range(4):
        emit(16 + i, X); cmul2(Y, X, Z2); emit(20 + i, Y)
        if i < 3: cmul2(X, X, Z1)
    cmul2(W_, W_, W_)
    cmul2(Z1, Z1, Z1)
    cquad(Y); cmul2(X, Y, W_); cmul2(Y, X, Z1)
    for b in range(4):
        emit(24 + 2 * b, X); emit(25 + 2 * b, Y)
        if b < 3: cmul2(X, X, Z2); cmul2(Y, Y, Z2)
    a("s_branch M_KWE")
    a.label("M_KW3")
    cquad(Y); cmul2(X, Y, Z1)
    for i in range(9):
        emit(32 + i, X)
        if i < 8: cmul2(X, X, Z2)
    a.label("M_KWE")
    a("""s_lshl_b32 s52, s56, 4
    v_add_u32 v7, s52, v3
    v_mul_u32_u24 v7, %d, v7
    v_lshl_add_u32 v7, v4, 4, v7
    v_add_u32 v7, s58, v7                 ; A frag addr
    v_add_u32 v8, 41, v3
    v_mul_u32_u24 v8, %d, v8
    v_lshl_add_u32 v8, v4, 4, v8
    v_add_u32 v8, s58, v8                 ; B frag addr
    s_lshl_b32 s52, s56, 6
    v_lshl_add_u32 v9, v4, 4, s52
    v_add_u32 v9, 0x%x, v9                ; htab addr
    s_mul_i32 s53, s74, %d
    s_add_u32 s53, s53, %d                ; TAB
    v_mov_b32 v56, 0
    v_mov_b32 v57, 0
    v_mov_b32 v58, 0
    v_mov_b32 v59, 0
    s_waitcnt lgkmcnt(0)
    s_barrier
    s_cmp_eq_u32 s56, 3
    s_cbranch_scc1 M_KM3""" % (RSV, RSV, HTV, TSV, TABV))
    for st in range(4):
        for k in range(4):
            a("ds_read_b128 v[%d:%d], v7 offset:%d" % (64 + 32 * st + 4 * k, 67 + 32 * st + 4 * k, k * KSV + 64 * st))
        for k in range(4):
            a("ds_read_b128 v[%d:%d], v8 offset:%d" % (80 + 32 * st + 4 * k, 83 + 32 * st + 4 * k, k * KSV + 64 * st))
        if st == 0: a("ds_read_b128 v[60:63], v9")
    a("v_lshl_add_u32 v10, v3, 4, s53")
    a("s_add_u32 s52, s53, 4352")
    for st in range(4):
        a("s_waitcnt lgkmcnt(%d)" % min(15, 8 * (3 - st)))
        A = 64 + 32 * st; B = 80 + 32 * st
        for (ka, kb) in ((0, 0), (0, 1), (1, 0), (2, 2), (2, 3), (3, 2)):
            a("v_mfma_f32_16x16x32_bf16 v[56:59], v[%d:%d], v[%d:%d], v[56:59]" % (A + 4 * ka, A + 4 * ka + 3, B + 4 * kb, B + 4 * kb + 3))
    for r in range(4):
        a("v_add_u32 v%d, v%d, v10" % (60 + r, 60 + r))
        a("v_min_u32 v%d, s52, v%d" % (60 + r, 60 + r))
    a("""s_nop 3
    v_cvt_pk_bf16_f32 v56, v56, v57
    v_cvt_pk_bf16_f32 v58, v58, v59
    ds_write_b16 v60, v56
    ds_write_b16_d16_hi v61, v56
    ds_write_b16 v62, v58
    ds_write_b16_d16_hi v63, v58
    s_branch M_KME""")
    a.label("M_KM3")
    a("s_cmp_lg_u32 s44, 3")
    a("s_cbranch_scc1 M_KME")
    spin(a, 1)
    a.label("M_KME")
    a("""v_and_b32 v5, 255, v0
    v_lshlrev_b32 v6, 3, v5
    v_sub_u32 v6, 2047, v6""")
    for e in range(12):
        a("v_subrev_u32 v%d, %d, v6" % (24 + e, min(e, 10)))
        a("v_cvt_f32_i32 v%d, v%d" % (24 + e, 24 + e))
    for e in range(0, 12, 2):
        a("v_cvt_pk_bf16_f32 v%d, v%d, v%d" % (40 + e // 2, 24 + e, 25 + e))
    for e in range(11):
        if e % 2 == 0: a("v_lshlrev_b32 v%d, 16, v%d" % (24 + e, 40 + e // 2))
        else: a("v_and_b32 v%d, 0xffff0000, v%d" % (24 + e, 40 + e // 2))
    for e in range(11):
        a("v_cvt_u32_f32 v%d, v%d" % (24 + e, 24 + e))
        a("v_lshl_add_u32 v%d, v%d, 1, s53" % (24 + e, 24 + e))
    a("""v_lshl_add_u32 v7, v5, 4, s75         ; KB + t*16
    v_lshrrev_b32 v8, 2, v0
    v_and_b32 v9, 3, v0
    v_lshlrev_b32 v10, 14, v8
    v_lshl_add_u32 v10, v9, 4, v10
    s_lshl_b32 s52, s46, 6
    s_add_u32 s54, s52, 0x200000
    s_waitcnt lgkmcnt(0)
    s_barrier
    buffer_load_dwordx4 v[96:99], v10, s[8:11], s52 offen sc1
    buffer_load_dwordx4 v[100:103], v10, s[8:11], s54 offen sc1""")
    for e in range(11):
        a("ds_read_u16 v%d, v%d" % (44 + e, 24 + e))
    a("""v_lshlrev_b32 v8, 4, v8
    v_and_b32 v10, 1, v9
    v_lshl_add_u32 v8, v10, 3, v8
    v_lshrrev_b32 v9, 1, v9
    v_mul_u32_u24 v9, %d, v9
    v_add_u32 v11, v8, v9                 ; ux lds addr
    v_mov_b32 v64, 0
    v_mov_b32 v65, 0
    v_mov_b32 v66, 0
    v_mov_b32 v67, 0
    v_cmp_eq_u32 vcc, 255, v5
    v_lshl_add_u32 v8, v1, 4, s75
    v_lshrrev_b32 v9, 2, v1
    v_mul_u32_u24 v9, %d, v9
    v_and_b32 v10, 3, v1
    v_lshl_add_u32 v9, v10, 4, v9
    v_add_u32 v9, s75, v9
    s_waitcnt lgkmcnt(0)
    v_cndmask_b32 v52, v52, v64, vcc
    v_cndmask_b32 v53, v53, v64, vcc
    v_cndmask_b32 v54, v54, v64, vcc""" % (CHS, S))
    for c in range(4):
        for j in range(4):
            a("v_lshl_or_b32 v%d, v%d, 16, v%d" % (68 + 4 * c + j, 45 + c + 2 * j, 44 + c + 2 * j))
        a("ds_write_b128 v7, v[%d:%d] offset:%d" % (68 + 4 * c, 71 + 4 * c, c * S))
    a("""ds_write_b128 v8, v[64:67] offset:%d
    v_cmp_gt_u32 vcc, 16, v1
    s_and_saveexec_b64 s[54:55], vcc
    ds_write_b128 v9, v[64:67] offset:4096
    s_mov_b64 exec, s[54:55]
    s_mov_b32 s52, 0x07060302
    s_mov_b32 s53, 0x05040100""" % UO)
    for j in range(2):
        b = 96 + 4 * j
        a("""s_waitcnt vmcnt({w})
        v_perm_b32 v16, v{b1}, v{b0}, s53
        v_perm_b32 v17, v{b3}, v{b2}, s53
        v_perm_b32 v18, v{b1}, v{b0}, s52
        v_perm_b32 v19, v{b3}, v{b2}, s52
        ds_write_b64 v11, v[16:17] offset:{ou}
        ds_write_b64 v11, v[18:19] offset:{ox}""".format(w=1 - j, b0=b, b1=b + 1, b2=b + 2, b3=b + 3, ou=UO + 1024 + 2048 * j, ox=XO + 2048 * j))
    a("""s_bfe_u32 s50, s44, 0x10001           ; mt
    s_and_b32 s51, s44, 1                 ; hf
    v_and_b32 v14, 3, v3
    v_sub_u32 v14, 3, v14
    v_mul_u32_u24 v14, %d, v14
    v_lshrrev_b32 v15, 2, v3
    v_lshlrev_b32 v15, 3, v15
    v_sub_u32 v14, v14, v15
    v_lshl_add_u32 v14, v4, 4, v14
    s_lshl_b32 s52, s51, 9
    s_sub_u32 s53, s75, s52
    s_lshl_b32 s54, s50, 5
    s_sub_u32 s54, s53, s54
    s_add_u32 s54, s54, %d
    v_add_u32 v14, s54, v14               ; vA
    v_lshlrev_b32 v15, 6, v3
    v_lshl_add_u32 v15, v4, 4, v15
    s_add_u32 s53, s53, %d
    v_add_u32 v15, s53, v15               ; vB""" % (S, 4088 - 448 - 3072, UO + 1024 - 448))
    for r in range(16):
        a("v_mov_b32 v%d, 0" % (16 + r))
    a("""s_waitcnt lgkmcnt(0)
    s_barrier""")
    FB = [32, 64]
    def cloads(t, fb):
        l = []
        for q in range(4):
            l.append("ds_read_b128 v[%d:%d], v15 offset:%d" % (fb + 4 * q, fb + 4 * q + 3, 64 * (7 - t) + 1024 * q))
        for j in range(4):
            r = fb + 16 + 4 * j
            off = 64 * (7 - t) + 1024 * (3 - j)
            l.append("ds_read_b64 v[%d:%d], v14 offset:%d" % (r, r + 1, off))
            l.append("ds_read_b64 v[%d:%d], v14 offset:%d" % (r + 2, r + 3, off + 8))
        return l
    for l in cloads(0, FB[0]): a(l)
    for t in range(8):
        fb = FB[t & 1]
        a("s_waitcnt lgkmcnt(0)")
        mf = []
        for j in range(4):
            for nt in range(j, 4):
                r = fb + 16 + 4 * j; b = fb + 4 * (nt - j); c = 16 + 4 * nt
                mf.append("v_mfma_f32_16x16x32_bf16 v[%d:%d], v[%d:%d], v[%d:%d], v[%d:%d]" % (c, c + 3, r, r + 3, b, b + 3, c, c + 3))
        ld = cloads(t + 1, FB[(t + 1) & 1]) if t < 7 else []
        for k in range(12):
            if k < len(ld): a(ld[k])
            if k < 10: a(mf[k])
            if k == 4 and t < 4: pf1()
        pf1()
    a("""s_and_b32 s52, s44, 3
    s_lshl_b32 s53, s52, 11
    s_add_u32 s53, s53, s75
    s_xor_b32 s52, s52, 1
    s_lshl_b32 s52, s52, 11
    s_add_u32 s52, s52, s75
    v_lshl_add_u32 v7, v1, 4, s53         ; write
    v_lshl_add_u32 v8, v1, 4, s52         ; read
    v_lshlrev_b32 v9, 6, v3
    v_lshl_add_u32 v9, v4, 3, v9
    s_lshl_b32 s52, s51, 11
    s_lshl_b32 s53, s50, 5
    s_add_u32 s52, s52, s53
    s_add_u32 s52, s52, s75
    v_add_u32 v9, s52, v9
    s_lshl_b32 s52, s74, 4
    s_lshr_b32 s77, s77, s52
    s_lshl_b32 s77, s77, 16               ; D_skip
    s_barrier
    s_cmp_eq_u32 s51, 0
    s_cbranch_scc1 M_RW0
    ds_write_b128 v7, v[16:19]
    ds_write_b128 v7, v[20:23] offset:1024""")
    for r in range(8): a("v_mov_b32 v%d, v%d" % (16 + r, 24 + r))
    a("s_branch M_RJ")
    a.label("M_RW0")
    a("""ds_write_b128 v7, v[24:27]
    ds_write_b128 v7, v[28:31] offset:1024""")
    a.label("M_RJ")
    for t in range(2):
        a("ds_read_b64 v[%d:%d], v9 offset:%d" % (40 + 2 * t, 41 + 2 * t, UO + 1024 + 1024 * t))
        a("ds_read_b64 v[%d:%d], v9 offset:%d" % (44 + 2 * t, 45 + 2 * t, XO + 1024 * t))
    a("""s_waitcnt lgkmcnt(0)
    s_barrier
    ds_read_b128 v[32:35], v8
    ds_read_b128 v[36:39], v8 offset:1024
    s_waitcnt lgkmcnt(0)""")
    for r in range(8): a("v_add_f32 v%d, v%d, v%d" % (16 + r, 16 + r, 32 + r))
    for t in range(2):
        for p in range(2):
            y0, y1 = 16 + 4 * t + 2 * p, 17 + 4 * t + 2 * p
            u = 40 + 2 * t + p; x = 44 + 2 * t + p
            a("""v_cvt_pk_bf16_f32 v{y0}, v{y0}, v{y1}
            v_lshlrev_b32 v50, 16, v{u}
            v_and_b32 v51, s60, v{u}
            v_mul_f32 v50, s77, v50
            v_mul_f32 v51, s77, v51
            v_cvt_pk_bf16_f32 v50, v50, v51
            v_and_b32 v{y1}, s60, v{y0}
            v_lshlrev_b32 v{y0}, 16, v{y0}
            v_and_b32 v51, s60, v50
            v_lshlrev_b32 v50, 16, v50
            v_add_f32 v{y0}, v{y0}, v50
            v_add_f32 v{y1}, v{y1}, v51
            v_cvt_pk_bf16_f32 v{y0}, v{y0}, v{y1}
            v_lshlrev_b32 v50, 16, v{x}
            v_and_b32 v51, s60, v{x}
            v_and_b32 v{y1}, s60, v{y0}
            v_lshlrev_b32 v{y0}, 16, v{y0}
            v_add_f32 v{y0}, v{y0}, v50
            v_add_f32 v{y1}, v{y1}, v51
            v_cvt_pk_bf16_f32 v{o}, v{y0}, v{y1}""".format(y0=y0, y1=y1, u=u, x=x, o=52 + 2 * t + p))
        a("ds_write_b64 v9, v[%d:%d] offset:%d" % (52 + 2 * t, 53 + 2 * t, XO + 1024 * t))
    a("""v_and_b32 v5, 255, v0
    v_lshl_add_u32 v5, v5, 4, s75
    v_lshlrev_b32 v6, 4, v0
    s_lshl_b32 s52, s46, 13
    s_add_u32 s52, s52, 0x%x
    s_waitcnt lgkmcnt(0)
    s_barrier
    ds_read_b128 v[8:11], v5 offset:%d
    s_waitcnt lgkmcnt(0)
    buffer_store_dwordx4 v[8:11], v6, s[8:11], s52 offen sc1""" % (MHT, XO))
    publish(a, 2)
    srd(a, 4, P_WD, 1376 * 1024)
    a("""s_lshr_b32 s52, s2, 3
    s_mul_i32 s52, s52, 43
    s_mul_i32 s53, s44, 6
    s_add_u32 s52, s52, s53
    s_sub_u32 s52, s52, 5
    s_lshl_b32 s52, s52, 10
    s_and_b32 s53, s73, 0x100
    s_lshl_b32 s53, s53, 1
    s_add_u32 s52, s52, s53
    v_lshrrev_b32 v5, 5, v1
    v_and_b32 v6, 31, v1
    v_lshlrev_b32 v6, 4, v6
    v_lshl_add_u32 v5, v5, 10, v6
    s_cmp_eq_u32 s44, 0
    s_cbranch_scc1 M_NOWARM
    buffer_load_dwordx4 v[172:175], v5, s[4:7], s52 offen
    buffer_load_dwordx4 v[176:179], v5, s[4:7], s52 offen offset:2048
    s_add_u32 s52, s52, 4096
    buffer_load_dwordx4 v[180:183], v5, s[4:7], s52 offen""")
    a.label("M_NOWARM")
    poll(a, 0, 2)
    a("s_cmp_ge_u32 s44, 4")
    a("s_cbranch_scc1 M_LOADER")
    import mega34
    mega34.consumer(a)
    a("s_endpgm")
    a.label("M_LOADER")
    mega34.loader(a, issueB3)
    a.label("M_EXIT")
    a("s_endpgm")
    txt = a.text()
    n = 0
    import re
    txt = txt.replace("CODE_LIMIT", "0x%x" % CODE_BYTES)
    return kernel_header(KNAME) + txt + kernel_desc(KNAME, 256, 100)
```
